```python
import torch

def _softmax(x, axis=-1):
    return torch.softmax(x, dim=axis)
def _gelu(x):
    return torch.nn.functional.gelu(x, approximate="tanh")
def _silu(x):
    return torch.nn.functional.silu(x)
def _sigmoid(x):
    return torch.sigmoid(x)
def _layernorm(x, axis=-1, eps=1e-5):
    m = x.mean(dim=axis, keepdim=True)
    v = x.var(dim=axis, keepdim=True, unbiased=False)
    return (x - m) / torch.sqrt(v + eps)
def _scatter_add(tgt, idx, src, axis=0):
    return tgt.clone().index_add_(axis, idx, src)
def _segment_sum(src, seg, n):
    out = torch.zeros((n,) + src.shape[1:], dtype=src.dtype)
    return out.index_add_(0, seg, src)
def _pad(x, pw):
    flat = tuple(v for pair in reversed(pw) for v in pair)
    return torch.nn.functional.pad(x, flat)

kernel_name = 'parallel_sum__ssm_conv_s4d__glu_gated_swiglu__prompt'

def setup_inputs():

    _w = (lambda a: (lambda t: t.to(torch.bfloat16) if t.is_floating_point() else t)(torch.as_tensor(a)))
    def _A_setup():
        Bsz, L, D, N = 1, 2048, 640, 128
        return {
            "u": _w((lambda *s: torch.randn(*s, dtype=torch.bfloat16) * 0.05)(Bsz, L, D)),
            "log_A_real": _w((lambda *s: torch.randn(*s, dtype=torch.bfloat16) * 3.2)(D, N) * 0.5),
            "A_imag": _w((lambda *s: torch.randn(*s, dtype=torch.bfloat16) * 0.05)(D, N) * 3.14),
            "C_real": _w((lambda *s: torch.randn(*s, dtype=torch.bfloat16) * 0.2)(D, N) / N ** 0.5),
            "C_imag": _w((lambda *s: torch.randn(*s, dtype=torch.bfloat16) * 0.2)(D, N) / N ** 0.5),
            "log_dt": _w((lambda *s: torch.randn(*s, dtype=torch.bfloat16) * 0.05)(D) * 0.5 - 4.0),
            "D_skip": _w((lambda *s: torch.randn(*s, dtype=torch.bfloat16) * 0.05)(D)),
        }
    _A_in = _A_setup()

    def _B_setup():
        B, S, D, F = 1, 2048, 640, 1728
        return {
            "x": _w((lambda *s: torch.randn(*s, dtype=torch.bfloat16) * 0.05)(B, S, D)),
            "w1": _w((lambda *s: torch.randn(*s, dtype=torch.bfloat16) * 0.4)(D, F) * (2.0 / D) ** 0.5),
            "w3": _w((lambda *s: torch.randn(*s, dtype=torch.bfloat16) * 0.4)(D, F) * (2.0 / D) ** 0.5),
            "w2": _w((lambda *s: torch.randn(*s, dtype=torch.bfloat16) * 0.4)(F, D) * (2.0 / F) ** 0.5),
        }
    _B_in = _B_setup()

    return {
        "A_u": _A_in["u"],
        "A_log_A_real": _A_in["log_A_real"],
        "A_A_imag": _A_in["A_imag"],
        "A_C_real": _A_in["C_real"],
        "A_C_imag": _A_in["C_imag"],
        "A_log_dt": _A_in["log_dt"],
        "A_D_skip": _A_in["D_skip"],
        "B_x": _B_in["x"],
        "B_w1": _B_in["w1"],
        "B_w3": _B_in["w3"],
        "B_w2": _B_in["w2"],
    }

def reference(A_u, A_log_A_real, A_A_imag, A_C_real, A_C_imag, A_log_dt, A_D_skip, B_x, B_w1, B_w3, B_w2):
    def _A_ref(u, log_A_real, A_imag, C_real, C_imag, log_dt, D_skip):
        L = u.shape[1]
        dt = torch.exp(log_dt)
        A = -torch.exp(log_A_real) + 1j * A_imag
        C = (C_real + 1j * C_imag) * dt[:, None]
        pos = (lambda x, dt: x.to(dt))(torch.arange(L), log_dt.dtype)
        P = torch.exp((A * dt[:, None])[:, :, None] * pos[None, None, :])
        K = 2.0 * torch.einsum("dn,dnl->dl", C, P).real
        L2 = 2 * L
        u_t = (lambda x, *d: x.permute(*d))(u, 0, 2, 1)
        Kf = (lambda x, *a, **k: torch.fft.rfft(x.float(), *a, **k))(K, L2)
        Uf = (lambda x, *a, **k: torch.fft.rfft(x.float(), *a, **k))(u_t, L2)
        y = (lambda x, *a, **k: torch.fft.irfft(x, *a, **k).to(torch.bfloat16))(Uf * Kf[None, :, :], L2)[:, :, :L]
        y = (lambda x, *d: x.permute(*d))(y, 0, 2, 1)
        return y + u * D_skip[None, None, :]

    def _B_ref(x, w1, w3, w2):
        gate = torch.einsum("bsd,df->bsf", x, w1)
        up = torch.einsum("bsd,df->bsf", x, w3)
        h = _silu(gate) * up
        out = torch.einsum("bsf,fd->bsd", h, w2)
        return out

    x = A_u
    xn = _layernorm(x, axis=-1)
    return x + _A_ref(xn, A_log_A_real, A_A_imag, A_C_real, A_C_imag, A_log_dt, A_D_skip) + _B_ref(xn, B_w1, B_w3, B_w2)
```

```python
import re

TRANS = ("v_exp_f32","v_log_f32","v_rcp_f32","v_rsq_f32","v_sqrt_f32","v_sin_f32","v_cos_f32","v_rcp_iflag_f32")
REG_RE = re.compile(r"^(-|\|)?(abs\()?([vsa])(\d+|\[(\d+):(\d+)\])\)?\|?$")

def regs_of(tok):
    tok = tok.strip()
    if tok in ("vcc",): return [("s",106),("s",107)]
    if tok == "vcc_lo": return [("s",106)]
    if tok == "vcc_hi": return [("s",107)]
    if tok == "exec": return [("s",126),("s",127)]
    if tok == "exec_lo": return [("s",126)]
    if tok == "exec_hi": return [("s",127)]
    if tok == "m0": return [("s",124)]
    m = REG_RE.match(tok)
    if not m: return []
    f = m.group(3)
    if m.group(5) is not None:
        return [(f,i) for i in range(int(m.group(5)), int(m.group(6))+1)]
    return [(f,int(m.group(4)))]

def split_ops(s):
    out=[]; depth=0; cur=""
    for ch in s:
        if ch in "[(": depth+=1
        if ch in "])": depth-=1
        if ch=="," and depth==0:
            out.append(cur.strip()); cur=""
        else: cur+=ch
    if cur.strip(): out.append(cur.strip())
    return out

class Ins:
    def __init__(self, text):
        self.text = text
        t = text.split(";")[0].strip()
        self.label = t.endswith(":")
        self.dst=[]; self.src=[]; self.kind="other"; self.mn=""
        self.srcA=[]; self.srcB=[]; self.srcC=[]; self.passes=0
        self.dpp=False; self.ldsdma=False; self.wide_store=False; self.data=[]
        if self.label or not t or t.startswith("."):
            self.kind="meta"; return
        parts = t.split(None,1)
        mn = parts[0]; self.mn = mn
        rest = parts[1] if len(parts)>1 else ""
        ops = split_ops(rest)
        mods=[]
        if ops:
            last = ops[-1].split()
            ops[-1] = last[0] if last else ""
            mods = last[1:]
        self.ops=ops; self.mods=mods
        base = re.sub(r"_(e32|e64|dpp|sdwa)$","",mn)
        self.base=base
        R = [regs_of(o) for o in ops]
        if mn.startswith("v_mfma"):
            self.kind="mfma"; self.dst=R[0]; self.srcA=R[1]; self.srcB=R[2]; self.srcC=R[3]
            self.src=R[1]+R[2]+R[3]
            self.passes = 8 if "32x32" in mn else 4
        elif mn.startswith("v_"):
            self.kind="valu"
            self.dpp = mn.endswith("_dpp") or any(m.startswith(("row_","quad_perm","wave_")) for m in mods)
            if base.startswith("v_cmp"):
                self.dst=R[0]; self.src=sum(R[1:],[])
                if base.startswith("v_cmpx"): self.dst=self.dst+[("s",126),("s",127)]
            elif base in ("v_permlane32_swap_b32","v_permlane16_swap_b32","v_swap_b32"):
                self.dst=R[0]+R[1]; self.src=R[0]+R[1]
            elif base in ("v_add_co_u32","v_sub_co_u32","v_subrev_co_u32","v_addc_co_u32","v_subb_co_u32","v_mad_u64_u32","v_div_scale_f32"):
                self.dst=R[0]+R[1]; self.src=sum(R[2:],[])
            else:
                self.dst=R[0]; self.src=sum(R[1:],[])
                if base in ("v_fmac_f32","v_dot2c_f32_bf16","v_pk_fmac_f16","v_writelane_b32") or self.dpp or mn.endswith("_sdwa"):
                    self.src = self.src + R[0]
                if base=="v_cndmask_b32" and len(ops)==3: self.src += [("s",106),("s",107)]
        elif mn.startswith("ds_"):
            self.kind="ds"
            if mn.startswith(("ds_read","ds_bpermute","ds_permute","ds_swizzle")) or "_rtn" in mn:
                self.dst=R[0]; self.src=sum(R[1:],[])
                if "d16" in mn: self.src += R[0]
            else:
                self.src=sum(R,[])
        elif mn.startswith(("buffer_","global_","flat_")):
            self.kind="vmem"
            if mn.startswith(("buffer_wbl2","buffer_inv")): pass
            elif "lds" in mods or "_lds_" in mn:
                self.ldsdma=True; self.src=sum(R,[])+[("s",124)]
            elif "_load" in mn:
                self.dst=R[0]; self.src=sum(R[1:],[])
                if "d16" in mn: self.src += R[0]
            elif "_atomic" in mn and "sc0" in mods:
                self.dst=R[0]; self.src=sum(R,[]) if mn.startswith("buffer") else sum(R[1:],[])
            else:
                self.src=sum(R,[])
                self.data = R[0] if mn.startswith("buffer") else R[1]
                self.wide_store = ("x4" in mn or "x3" in mn)
        elif mn.startswith(("s_load","s_buffer_load","s_memtime","s_memrealtime")):
            self.kind="smem"; self.dst=R[0]; self.src=sum(R[1:],[])
        elif mn.startswith("s_"):
            self.kind="salu"
            if mn in ("s_waitcnt","s_nop","s_barrier","s_endpgm","s_sleep","s_setprio","s_branch") or mn.startswith("s_cbranch"):
                self.kind="ctl"
            elif mn.startswith("s_cmp") or mn.startswith("s_bitcmp"):
                self.src=sum(R,[])
            else:
                self.dst=R[0] if R else []; self.src=sum(R[1:],[])
                if "saveexec" in mn: self.dst=self.dst+[("s",126),("s",127)]
                if mn in ("s_addk_i32","s_mulk_i32"): self.src+=R[0]
    def states(self):
        if self.kind=="meta": return 0
        if self.mn=="s_nop": return int(self.ops[0],0)+1
        return 1

def need_between(p, c):
    n=0
    pd=set(p.dst);
    cs=set(c.src); cd=set(c.dst)
    if p.kind=="valu":
        pv={r for r in pd if r[0]=="v"}; ps={r for r in pd if r[0]=="s"}
        if c.kind=="mfma" and pv & cs: n=max(n,2)
        if c.kind=="mfma" and (("s",126) in ps): n=max(n,4)
        if c.kind=="valu":
            if c.dpp and pv & cs: n=max(n,2)
            if c.dpp and ("s",126) in ps: n=max(n,5)
            if c.base.startswith("v_permlane") and pv & cs: n=max(n,2)
            if c.base.startswith("v_permlane") and ("s",126) in ps: n=max(n,4)
            if c.base in ("v_readfirstlane_b32","v_readlane_b32") and pv & cs: n=max(n,1)
            if c.base in ("v_readfirstlane_b32","v_readlane_b32","v_writelane_b32") and ("s",126) in ps: n=max(n,4)
            if ps & cs:
                n=max(n,4 if c.base in ("v_readlane_b32","v_writelane_b32","v_div_fmas_f32") else 2)
            if p.base in TRANS and (pv & cs): n=max(n,1)
            if (p.mn.endswith("_sdwa") or any(m.startswith("op_sel") for m in p.mods) and not p.base.startswith("v_pk_")) and (pv & (cs|cd)): n=max(n,1)
            if p.base.startswith("v_dot") and (pv & (cs|cd)):
                if c.base==p.base and not (pv & set(sum([regs_of(o) for o in c.ops[1:3]],[]))): pass
                else: n=max(n,3)
        if c.kind=="vmem" and ps & cs: n=max(n,5)
        if c.kind in ("salu","smem") and ps & cs: n=max(n,1)
        if p.base.startswith("v_dot") and c.kind in("vmem","ds","mfma") and pv & cs: n=max(n,3)
    if p.kind=="mfma":
        P=p.passes
        if c.kind=="mfma":
            if pd & set(c.srcA+c.srcB): n=max(n, {4:8,8:12}[P])
            if pd & set(c.srcC):
                if not (c.srcC==p.dst and c.passes==P): n=max(n,{4:6,8:10}[P])
            elif pd & cd: n=max(n,{4:6,8:10}[P])
        elif c.kind in ("valu","vmem","ds"):
            if pd & (cs|cd): n=max(n,{4:8,8:12}[P])
            if c.kind=="valu" and set(p.srcC) & cd: n=max(n,{4:3,8:7}[P])
    if p.kind=="salu":
        if ("s",124) in pd and (c.ldsdma or c.mn.startswith("s_movrel") or "addtid" in c.mn): n=max(n,1)
    if p.kind=="vmem" and p.wide_store:
        if set(p.data) & cd: n=max(n,2)
    if p.kind=="ds" and p.mn in ("ds_write_b128","ds_write_b96","ds_write2_b64"):
        if c.kind=="valu" and set(p.src) & cd: n=max(n,2)
    return n

class Asm:
    def __init__(self):
        self.lines=[]
    def __call__(self, text):
        for l in text.split("\n"):
            l=l.strip()
            if l and not l.startswith(";"): self.lines.append(l)
    def label(self, name): self.lines.append(name+":")
    def extend(self, other): self.lines += other.lines
    def finalize(self, check_wait=True, name=""):
        out=[]; hist=[]
        pos=0
        for l in self.lines:
            c=Ins(l)
            if c.kind!="meta":
                need=0
                for (p,pp) in reversed(hist):
                    dist = pos-pp-1+0
                    if dist>=20: break
                    nb=need_between(p,c)
                    if nb>dist: need=max(need, nb-dist)
                while need>0:
                    k=min(need,16)
                    nop=Ins(f"s_nop {k-1}")
                    out.append(nop); hist.append((nop,pos+k-1)); pos+=k; need-=k
                hist.append((c,pos+c.states()-1)); pos+=c.states()
                if len(hist)>40: hist=hist[-40:]
            out.append(c)
        if check_wait: check_waitcnt(out, name)
        return "\n".join(("" if i.label else "  ")+i.text for i in out)+"\n"

def check_waitcnt(ins, name=""):
    vm=[]; lg=[]
    errs=0
    for idx,i in enumerate(ins):
        if i.kind=="meta": continue
        if i.mn in ("s_endpgm","s_branch"):
            vm=[]; lg=[]; continue
        if i.mn=="s_waitcnt":
            t=i.text
            m=re.search(r"vmcnt\((\d+)\)",t)
            if m:
                n=int(m.group(1)); vm = vm[len(vm)-n:] if n>0 and n<len(vm) else ([] if n==0 else vm)
            m=re.search(r"lgkmcnt\((\d+)\)",t)
            if m:
                n=int(m.group(1))
                if n==0: lg=[]
                elif any(k=="smem" for k,_ in lg): pass
                else: lg = lg[len(lg)-n:] if n<len(lg) else lg
            continue
        use=set(i.src)|set(i.dst)
        for k,d in vm+lg:
            if d & use:
                if (d & set(i.src)) or not (i.kind==k):
                    print(f"WAITCNT ERROR [{name}] line {idx}: '{i.text}' touches pending {k} result {sorted(d&use)[:4]}")
                    errs+=1
        if i.kind=="vmem":
            vm.append(("vmem",set(i.dst)))
            if len(vm)>63: print(f"WARN [{name}] vmcnt overflow at {i.text}")
        if i.kind=="ds": lg.append(("ds",set(i.dst)))
        if i.kind=="smem": lg.append(("smem",set(i.dst)))
    if errs: raise SystemExit(f"{errs} waitcnt errors in {name}")

def kernel_text(name, body, vgpr=256, sgpr=100, accum=None):
    if accum is None: accum=min(256,(vgpr+3)//4*4)
    return f""".globl {name}
.p2align 8
.type {name},@function
{name}:
{body}
.section .rodata,"a"
.p2align 6
.amdhsa_kernel {name}
  .amdhsa_next_free_vgpr {vgpr}
  .amdhsa_next_free_sgpr {sgpr}
  .amdhsa_accum_offset {accum}
  .amdhsa_group_segment_fixed_size 0
  .amdhsa_kernarg_size 112
  .amdhsa_user_sgpr_count 2
  .amdhsa_user_sgpr_kernarg_segment_ptr 1
  .amdhsa_system_sgpr_workgroup_id_x 1
  .amdhsa_float_denorm_mode_32 3
.end_amdhsa_kernel
.text
"""
def v(a,n=1): return f"v{a}" if n==1 else f"v[{a}:{a+n-1}]"
def s(a,n=1): return f"s{a}" if n==1 else f"s[{a}:{a+n-1}]"
```

```python
from asmlib import *
import struct
WS_EPOCH= 0x0000000
WS_STAT = 0x0001000
WS_CS   = 0x0008000
WS_FLAG = 0x0030000
WS_H    = 0x0100000
WS_W2P  = 0x0900000
WS_XNT  = 0x0C00000
WS_KT   = 0x0F00000
WS_YT   = 0x1200000
WS_SIZE = 0x1500000
WS_STAMP= 0x4000000
H_BYTES = 2048*1728*2
X_BYTES = 2048*640*2
W_BYTES = 640*1728*2
LOG2E = 1.4426950408889634
OOB = 0x7fffff00
def fbits(x): return "0x%08x" % struct.unpack("<I", struct.pack("<f", x))[0]

def srd(a, d, b, size, off=0):
    if off:
        a(f"s_add_u32 s{d}, s{b}, {off}")
        a(f"s_addc_u32 s{d+1}, s{b+1}, 0")
    else:
        a(f"s_mov_b32 s{d}, s{b}")
        a(f"s_mov_b32 s{d+1}, s{b+1}")
    a(f"s_mov_b32 s{d+2}, {size}")
    a(f"s_mov_b32 s{d+3}, 0x20000")

def bf16r(a, dst, src):
    a(f"v_cvt_pk_bf16_f32 v{dst}, v{src}, v{src}")
    a(f"v_lshlrev_b32 v{dst}, 16, v{dst}")

def stampx(a,opt,k):
    if opt.get("stamp"): a(f"s_memrealtime s[{60+2*k}:{61+2*k}]")
def stamp0(a,opt):
    if opt.get("stamp"):
        a("s_memrealtime s[60:61]\ns_memtime s[76:77]")
        for k in list(range(62,72))+[78,79,80,81]: a(f"s_mov_b32 s{k}, 0")
def write_stamp(a,opt,kidx,ws=6):
    if not opt.get("stamp"): return
    a(f"""
    s_waitcnt vmcnt(0)
    s_memrealtime s[72:73]
    s_memtime s[74:75]
    s_waitcnt lgkmcnt(0)
    s_sub_u32 s74, s74, s76
    s_sub_u32 s75, s80, s78
    """)
    for k in range(16): a(f"v_mov_b32 v{40+k}, s{60+k}")
    a(f"""
    s_add_u32 s89, s2, {kidx*1024}
    s_lshl_b32 s89, s89, 6
    s_add_u32 s89, s89, {WS_STAMP}
    v_mov_b32 v59, s89
    s_mov_b64 s[82:83], exec
    s_mov_b64 exec, 1
    global_store_dwordx4 v59, v[40:43], s[{ws}:{ws+1}]
    global_store_dwordx4 v59, v[44:47], s[{ws}:{ws+1}] offset:16
    global_store_dwordx4 v59, v[48:51], s[{ws}:{ws+1}] offset:32
    global_store_dwordx4 v59, v[52:55], s[{ws}:{ws+1}] offset:48
    s_waitcnt vmcnt(0)
    s_mov_b64 exec, s[82:83]
    """)
```

```python
from common import *
XS = 32768; WB = 98304; MISC = 147456
LDS_STAT = MISC
LDS_CS = MISC + 4096
LDS_LN = MISC + 4608
LNS = 1344
ACC=128
ST="sc1"
def acc(tf,m,ft): return ACC+((tf*2+m)*2+ft)*4

def decode_ids(a):
    a("""
    s_and_b32 s27, s2, 7
    s_lshr_b32 s28, s2, 3
    s_lshl_b32 s29, s27, 5
    s_add_u32 s29, s29, s28
    s_and_b32 s24, s27, 1
    s_mul_i32 s24, s24, 27
    s_add_u32 s24, s24, s28
    s_lshr_b32 s25, s24, 1           ; nt
    s_and_b32 s24, s24, 1
    s_and_b32 s27, s27, 6
    s_add_u32 s24, s27, s24          ; mt
    """)

def make_tag(a):
    a("s_mul_i32 s3, s3, 0x9E3779B1\ns_add_u32 s3, s3, 0x7F4A7C15")

def ln_issue(a):
    a("""
    v_lshrrev_b32 v13, 5, v1
    v_mul_u32_u24 v13, 1280, v13
    v_and_b32 v14, 31, v1
    v_lshl_add_u32 v13, v14, 3, v13
    s_lshl_b32 s27, s29, 2
    s_add_u32 s27, s27, s26
    s_mul_i32 s27, s27, 2560
    """)
    for i in range(5): a(f"buffer_load_dwordx2 {v(16+2*i,2)}, v13, s[8:11], s27 offen offset:{i*256}")

def red32(a, r, t):
    for n in (8,4,2,1): a(f"v_add_f32_dpp v{r}, v{r}, v{r} row_ror:{n} row_mask:0xf bank_mask:0xf")
    a(f"v_mov_b32 v{t}, v{r}\nv_permlane16_swap_b32 v{t}, v{r}\nv_add_f32 v{r}, v{r}, v{t}")

def ln_compute(a, after):
    E=32
    a(f"s_waitcnt vmcnt({after})")
    for k in range(10):
        a(f"v_lshlrev_b32 v{E+2*k}, 16, v{16+k}")
        a(f"v_and_b32 v{E+2*k+1}, 0xffff0000, v{16+k}")
    for k in range(5): a(f"v_pk_add_f32 {v(52+2*k,2)}, {v(E+4*k,2)}, {v(E+4*k+2,2)}")
    a("""v_pk_add_f32 v[52:53], v[52:53], v[54:55]
    v_pk_add_f32 v[56:57], v[56:57], v[58:59]
    v_pk_add_f32 v[52:53], v[52:53], v[60:61]
    v_pk_add_f32 v[52:53], v[52:53], v[56:57]
    v_add_f32 v52, v52, v53""")
    red32(a,52,53)
    a(f"v_mul_f32 v52, {fbits(1/640)}, v52")
    for k in range(10): a(f"v_pk_add_f32 {v(E+2*k,2)}, {v(E+2*k,2)}, v[52:53] op_sel:[0,0] op_sel_hi:[1,0] neg_lo:[0,1] neg_hi:[0,1]")
    a(f"v_pk_mul_f32 v[54:55], {v(E,2)}, {v(E,2)}\nv_pk_mul_f32 v[56:57], {v(E+2,2)}, {v(E+2,2)}")
    for k in range(2,10): a(f"v_pk_fma_f32 {v(54+2*(k&1),2)}, {v(E+2*k,2)}, {v(E+2*k,2)}, {v(54+2*(k&1),2)}")
    a("v_pk_add_f32 v[54:55], v[54:55], v[56:57]\nv_add_f32 v54, v54, v55")
    bf16r(a,58,52)
    red32(a,54,55)
    a(f"v_mul_f32 v54, {fbits(1/640)}, v54")
    bf16r(a,54,54)
    a(f"v_add_f32 v54, {fbits(1e-5)}, v54")
    bf16r(a,54,54)
    a("v_sqrt_f32 v54, v54")
    bf16r(a,54,54)
    a("""v_rcp_f32 v56, v54
    v_sub_f32 v57, v52, v58
    v_lshrrev_b32 v58, 16, v58
    v_mul_f32 v57, v57, v56
    v_or_b32 v58, v54, v58""")
    for k in range(10): a(f"v_pk_fma_f32 {v(E+2*k,2)}, {v(E+2*k,2)}, v[56:57], v[56:57] op_sel:[0,0,1] op_sel_hi:[1,0,1]")
    for k in range(10): a(f"v_cvt_pk_bf16_f32 v{16+k}, v{E+2*k}, v{E+2*k+1}")
    a(f"""
    v_lshrrev_b32 v13, 5, v1
    s_lshl_b32 s27, s26, 1
    v_add_u32 v13, s27, v13
    v_mul_u32_u24 v15, {LNS}, v13
    v_lshl_add_u32 v15, v14, 3, v15
    v_add_u32 v15, {LDS_LN}, v15
    """)
    for i in range(5): a(f"ds_write_b64 v15, {v(16+2*i,2)} offset:{i*256}")
    a(f"""
    v_lshlrev_b32 v13, 3, v13
    s_lshl_b32 s27, s29, 6
    s_add_u32 s27, s27, {WS_STAT}
    s_waitcnt lgkmcnt(0)
    """)
    make_tag(a)
    a(f"""v_mov_b32 v59, s3
    s_mov_b32 exec_lo, 1
    s_mov_b32 exec_hi, 1
    buffer_store_dwordx2 v[58:59], v13, s[20:23], s27 offen {ST}
    s_mov_b64 exec, -1""")

def ln_part2(a, lw="s30", T=48):
    a(f"""
    v_lshrrev_b32 v{T}, 2, v1
    v_and_b32 v{T+1}, 3, v{T}
    v_mul_u32_u24 v{T+1}, {LNS}, v{T+1}
    v_lshrrev_b32 v{T+2}, 4, v1
    v_lshl_add_u32 v{T+1}, v{T+2}, 5, v{T+1}
    v_and_b32 v{T+2}, 3, v1
    v_lshl_add_u32 v{T+1}, v{T+2}, 3, v{T+1}
    s_lshl_b32 s27, {lw}, 7
    s_add_u32 s27, s27, {LDS_LN}
    v_add_u32 v{T+1}, s27, v{T+1}
    """)
    for j in range(3):
        a(f"ds_read_b64_tr_b16 {v(T+4+4*j,2)}, v{T+1} offset:{j*512}")
        a(f"ds_read_b64_tr_b16 {v(T+6+4*j,2)}, v{T+1} offset:{j*512+4*LNS}")
    a(f"""
    v_lshlrev_b32 v{T}, 14, v{T}
    v_lshl_add_u32 v{T}, v{T+2}, 4, v{T}
    s_lshl_b32 s27, {lw}, 18
    s_lshl_b32 s28, s29, 6
    s_add_u32 s27, s27, s28
    s_add_u32 s27, s27, {WS_XNT}
    s_add_u32 s28, s27, {4<<18}
    s_add_u32 s34, s27, {8<<18}
    s_cmp_lt_u32 {lw}, 2
    s_cselect_b32 s34, s34, {OOB}
    s_waitcnt lgkmcnt(0)
    buffer_store_dwordx4 {v(T+4,4)}, v{T}, s[20:23], s27 offen {ST}
    buffer_store_dwordx4 {v(T+8,4)}, v{T}, s[20:23], s28 offen {ST}
    buffer_store_dwordx4 {v(T+12,4)}, v{T}, s[20:23], s34 offen {ST}
    """)

def w_addr(a, dst, ftreg, tmp):
    a(f"""
    v_lshrrev_b32 v{tmp}, 2, v1
    v_and_b32 v{tmp}, 3, v{tmp}                    ; r
    v_lshrrev_b32 v{tmp+1}, 4, v1                  ; kg
    v_lshl_add_u32 v{dst}, v{tmp+1}, 3, v{tmp}
    v_lshlrev_b32 v{dst}, 7, v{dst}
    v_lshrrev_b32 v{tmp}, 1, v{tmp}                ; (row>>1)&1
    v_and_b32 v{tmp+1}, 1, v{tmp+1}
    v_lshl_add_u32 v{tmp}, v{tmp+1}, 1, v{tmp}     ; swz
    v_xor_b32 v{tmp}, {ftreg}, v{tmp}
    v_lshl_add_u32 v{dst}, v{tmp}, 5, v{dst}
    v_and_b32 v{tmp}, 3, v1
    v_lshl_add_u32 v{dst}, v{tmp}, 3, v{dst}
    v_add_u32 v{dst}, {WB}, v{dst}
    """)

def cwave_setup(a):
    a("""
    v_and_b32 v11, 15, v1
    v_lshrrev_b32 v12, 4, v1      ; kg
    v_lshrrev_b32 v26, 1, v11     ; swz
    v_xor_b32 v26, v26, v12
    v_lshlrev_b32 v26, 4, v26
    v_lshl_add_u32 v26, v11, 7, v26
    s_lshr_b32 s27, s26, 1        ; j
    s_lshl_b32 s27, s27, 14
    v_add_u32 v2, s27, v26
    v_xor_b32 v3, 64, v2
    s_and_b32 s28, s26, 1
    s_lshl_b32 s28, s28, 1
    """)
    w_addr(a, 6, "s28", 26)
    a("v_xor_b32 v7, 32, v6")
    a("v_mov_b32 v4, v2\nv_mov_b32 v5, v3\nv_mov_b32 v8, v6\nv_mov_b32 v9, v7\ns_mov_b32 s30, 0\ns_mov_b32 s31, 10")
    for r in range(ACC,256,2): a(f"v_mov_b64 {v(r,2)}, 0")

def cwave_loop(a, opt, name):
    FB=32
    def wf(p,m,ft): return FB+48*p+4*(m*2+ft)
    def xf(p,tf): return FB+48*p+16+4*tf
    def reads(ks, p):
        wo = ks*4096
        def W(m,ft): return [f"ds_read_b64_tr_b16 {v(wf(p,m,ft),2)}, v{8+ft} offset:{wo+m*8192}",
                          f"ds_read_b64_tr_b16 {v(wf(p,m,ft)+2,2)}, v{8+ft} offset:{wo+m*8192+512}"]
        def X(tf): return [f"ds_read_b128 {v(xf(p,tf),4)}, v{4+ks} offset:{tf*2048}"]
        return W(0,0)+X(0)+W(0,1)+W(1,0)+W(1,1)+sum([X(t) for t in range(1,8)],[])
    a("s_barrier")
    stampx(a,opt,2)
    if opt.get("stamp"): a("s_memtime s[78:79]")
    a("s_setprio 2")
    rd=reads(0,0)
    for r in rd[:12]: a(r)
    a("s_waitcnt lgkmcnt(0)" if opt.get("stamp") else "s_waitcnt lgkmcnt(8)")
    for r in rd[12:]: a(r)
    seq=[(tf,m,ft) for tf in range(8) for m in range(2) for ft in range(2)]
    a(".p2align 6")
    a.label(f"L_{name}_cloop")
    for ks in range(2):
        p = ks
        a("s_waitcnt lgkmcnt(0)")
        nxt = reads(1,1) if ks==0 else reads(0,0)
        if ks==0:
            extra={18:"s_add_u32 s30, s30, 16384",19:"s_cmp_eq_u32 s30, 49152",20:"s_cselect_b32 s30, 0, s30",21:"s_lshl_b32 s32, s30, 1",
                   22:"v_add_u32 v8, s30, v6",23:"v_add_u32 v9, s30, v7",24:"v_add_u32 v4, s32, v2",25:"v_add_u32 v5, s32, v3"}
        else:
            extra={28:"s_sub_u32 s31, s31, 1",29:"s_cmp_lg_u32 s31, 0"}
        for i,(tf,m,ft) in enumerate(seq):
            C = v(acc(tf,m,ft),4)
            a(f"v_mfma_f32_16x16x32_bf16 {C}, {v(wf(p,m,ft),4)}, {v(xf(p,tf),4)}, {C}")
            if i==1 and ks==1: a("s_barrier")
            k=i-1
            if 0<=k<len(nxt): a(nxt[k])
            if i in extra: a(extra[i])
    a(f"s_cbranch_scc1 L_{name}_cloop")
    a("s_waitcnt lgkmcnt(0)")
    stampx(a,opt,3)
    if opt.get("stamp"): a("s_memtime s[80:81]")

def epilogue(a, opt):
    a(f"""
    s_lshr_b32 s27, s26, 1
    s_lshl_b32 s27, s27, 11
    s_add_u32 s27, s27, {LDS_STAT}
    v_lshl_add_u32 v13, v11, 4, s27
    s_and_b32 s28, s26, 1
    s_lshl_b32 s28, s28, 7
    s_add_u32 s28, s28, {LDS_CS}
    v_lshl_add_u32 v14, v12, 4, s28
    s_waitcnt vmcnt(0)
    """)
    for m in range(2):
        for ft in range(2):
            a(f"ds_read_b128 {v(16+8*m+4*ft,4)}, v14 offset:{m*256+ft*64}")
    for tf in range(8):
        a(f"ds_read_b128 {v(32+4*tf,4)}, v13 offset:{tf*256}")
    a(f"""
    v_lshlrev_b32 v15, 4, v1
    s_lshl_b32 s27, s24, 2
    s_and_b32 s28, s26, 2
    s_add_u32 s27, s27, s28
    s_mul_i32 s27, s27, 54
    s_lshl_b32 s28, s25, 1
    s_add_u32 s27, s27, s28
    s_and_b32 s28, s26, 1
    s_add_u32 s27, s27, s28
    s_lshl_b32 s27, s27, 12
    s_add_u32 s27, s27, {WS_H}
    s_add_u32 s28, s27, {54*4096}
    s_waitcnt lgkmcnt(0)
    """)
    T=64
    for tf in range(8):
        st=32+4*tf
        G=acc(tf,0,0); U=acc(tf,1,0)
        prs=[0,2,4,6]
        for q,r in enumerate(prs):
            a(f"v_pk_fma_f32 {v(G+r,2)}, {v(16+r,2)}, {v(st,2)}, {v(G+r,2)} op_sel:[0,0,0] op_sel_hi:[1,0,1]")
        for q,r in enumerate(prs):
            a(f"v_pk_mul_f32 {v(T+2*q,2)}, {v(G+r,2)}, {v(st,2)} op_sel:[0,1] op_sel_hi:[1,1]")
        for q,r in enumerate(prs):
            a(f"v_exp_f32 v{T+2*q}, v{T+2*q}")
            a(f"v_pk_fma_f32 {v(U+r,2)}, {v(24+r,2)}, {v(st,2)}, {v(U+r,2)} op_sel:[0,0,0] op_sel_hi:[1,0,1]")
            a(f"v_exp_f32 v{T+2*q+1}, v{T+2*q+1}")
        for q,r in enumerate(prs):
            a(f"v_pk_fma_f32 {v(T+2*q,2)}, {v(T+2*q,2)}, {v(st+2,2)}, {v(st+2,2)} op_sel:[0,0,0] op_sel_hi:[1,0,0]")
        for q,r in enumerate(prs):
            a(f"v_rcp_f32 v{T+2*q}, v{T+2*q}")
            a(f"v_pk_mul_f32 {v(G+r,2)}, {v(G+r,2)}, {v(U+r,2)}")
            a(f"v_rcp_f32 v{T+2*q+1}, v{T+2*q+1}")
        for q,r in enumerate(prs):
            a(f"v_pk_mul_f32 {v(G+r,2)}, {v(G+r,2)}, {v(T+2*q,2)}")
        O=72+4*(tf%4)
        for q,r in enumerate(prs):
            a(f"v_cvt_pk_bf16_f32 v{O+q}, v{G+r}, v{G+r+1}")
        so = "s27" if tf<4 else "s28"
        a(f"buffer_store_dwordx4 {v(O,4)}, v15, s[20:23], {so} offen offset:{(tf&3)*1024} {ST}")

SPIN_MAX = 200000
def lwave(a, opt, name):
    a("""
    s_sub_u32 s30, s26, 4               ; lw
    v_lshrrev_b32 v2, 3, v1
    v_and_b32 v3, 7, v1
    v_lshrrev_b32 v4, 4, v1
    s_and_b32 s27, s30, 1
    s_lshl_b32 s27, s27, 2
    v_add_u32 v5, s27, v4
    v_xor_b32 v5, v5, v3
    v_lshlrev_b32 v5, 4, v5
    v_mul_u32_u24 v6, 1280, v2
    v_add_u32 v6, v6, v5                ; X voffset
    v_and_b32 v4, 1, v4
    v_lshl_add_u32 v4, v4, 1, s27
    v_xor_b32 v4, v4, v3
    v_lshlrev_b32 v4, 4, v4
    v_mul_u32_u24 v7, 3456, v2
    v_add_u32 v7, v7, v4                ; W voffset
    s_lshl_b32 s31, s24, 8
    s_lshl_b32 s27, s30, 3
    s_add_u32 s31, s31, s27
    s_mul_i32 s31, s31, 1280
    s_mul_i32 s32, s27, 3456
    s_lshl_b32 s27, s25, 7
    s_add_u32 s32, s32, s27
    s_lshl_b32 s33, s30, 10
    s_lshr_b32 s35, s24, 1
    s_mul_i32 s35, s35, 5
    s_lshr_b32 s35, s35, 1
    s_mov_b32 s38, 0
    s_mov_b32 s45, 0
    """)
    a.label(f"L_{name}_lloop")
    a(f"""s_lshl_b32 s36, s35, 7
    s_add_u32 s36, s36, s31
    s_mul_i32 s37, s35, {64*3456}
    s_add_u32 s37, s37, s32
    s_add_u32 s35, s35, 1
    s_cmp_eq_u32 s35, 10
    s_cselect_b32 s35, 0, s35
    s_add_u32 s39, s38, s33
    s_add_u32 s44, s39, s38
    s_add_u32 s38, s38, 16384
    s_cmp_eq_u32 s38, 49152
    s_cselect_b32 s38, 0, s38
    """)
    for i in range(2):
        for m in range(2):
            a(f"s_add_u32 m0, s39, {WB+m*8192+i*4096}\ns_add_u32 s34, s37, {32*i*3456}\nbuffer_load_dwordx4 v7, s[{12+4*m}:{15+4*m}], s34 offen lds")
    for i in range(8):
        a(f"s_add_u32 m0, s44, {i*4096}\ns_add_u32 s34, s36, {i*40960}\nbuffer_load_dwordx4 v6, s[8:11], s34 offen lds")
    a(f"""s_add_u32 s45, s45, 1
    s_cmp_eq_u32 s45, 1
    s_cbranch_scc1 L_{name}_lloop
    s_sub_u32 s27, s45, 3
    s_cmp_gt_u32 s27, 2
    s_cbranch_scc1 L_{name}_lwait
    s_cmp_gt_u32 s45, 3
    s_cbranch_scc1 L_{name}_lcs
    """)
    ln_part2(a)
    w_addr(a, 10, "s30", 14)
    a("""s_and_b32 s27, s24, 1
    s_lshl_b32 s27, s27, 13
    v_add_u32 v10, s27, v10
    v_mov_b32 v20, 0x3f803f80
    v_mov_b32 v21, 0x3f803f80
    v_mov_b32 v22, 0x3f803f80
    v_mov_b32 v23, 0x3f803f80
    v_mov_b64 v[24:25], 0
    v_mov_b64 v[26:27], 0
    s_bfe_u32 s46, s24, 0x10001          ; q&1
    """)
    make_tag(a)
    a.label(f"L_{name}_lcs")
    a(f"""ds_read_b64_tr_b16 v[28:29], v10
    ds_read_b64_tr_b16 v[30:31], v10 offset:512
    ds_read_b64_tr_b16 v[32:33], v10 offset:4096
    ds_read_b64_tr_b16 v[34:35], v10 offset:4608
    v_add_u32 v10, 16384, v10
    s_mul_i32 s27, s46, 3
    s_waitcnt lgkmcnt(0)
    s_cmp_eq_u32 s45, s27
    s_cbranch_scc1 L_{name}_lcs1
    v_mfma_f32_16x16x32_bf16 v[24:27], v[20:23], v[28:31], v[24:27]
    """)
    a.label(f"L_{name}_lcs1")
    a(f"""s_add_u32 s27, s46, 5
    s_cmp_eq_u32 s45, s27
    s_cbranch_scc1 L_{name}_lcs2
    v_mfma_f32_16x16x32_bf16 v[24:27], v[20:23], v[32:35], v[24:27]
    """)
    a.label(f"L_{name}_lcs2")
    a(f"""s_cmp_eq_u32 s45, 4
    s_cbranch_scc1 L_{name}_lwait
    s_cmp_eq_u32 s45, 3
    s_cbranch_scc1 L_{name}_lwait15
    s_lshl_b32 s27, s25, 1
    s_and_b32 s28, s24, 1
    s_add_u32 s27, s27, s28
    s_lshl_b32 s27, s27, 2
    s_add_u32 s27, s27, s30
    s_lshl_b32 s27, s27, 9
    s_lshr_b32 s28, s24, 1
    s_lshl_b32 s28, s28, 3
    s_add_u32 s27, s27, s28
    s_add_u32 s27, s27, {WS_CS}
    v_lshlrev_b32 v14, 5, v1
    v_mov_b32 v25, s3
    s_mov_b64 exec, 0xffff
    buffer_store_dwordx2 v[24:25], v14, s[20:23], s27 offen {ST}
    s_lshl_b32 s27, s29, 2
    s_add_u32 s27, s27, {WS_FLAG}
    s_cmp_eq_u32 s30, 0
    s_cselect_b32 s27, s27, {OOB}
    s_mov_b64 exec, 1
    buffer_store_dword v25, v14, s[20:23], s27 offen {ST}
    s_mov_b64 exec, -1
    s_waitcnt vmcnt(14)
    s_branch L_{name}_lbar
    """)
    a.label(f"L_{name}_lwait15")
    a(f"s_waitcnt vmcnt(15)\ns_branch L_{name}_lbar")
    a.label(f"L_{name}_lwait")
    a("s_waitcnt vmcnt(12)")
    a.label(f"L_{name}_lbar")
    a(f"""s_barrier
    s_cmp_lt_u32 s45, 10
    s_cbranch_scc1 L_{name}_lloop
    """)
    a(f"""
    s_lshl_b32 s27, s24, 2
    s_add_u32 s27, s27, s30
    s_lshl_b32 s27, s27, 9
    s_add_u32 s27, s27, {WS_STAT}
    v_lshlrev_b32 v14, 3, v1
    s_lshl_b32 s28, s25, 2
    s_add_u32 s28, s28, s30
    s_lshl_b32 s28, s28, 10
    s_add_u32 s28, s28, {WS_CS}
    v_and_b32 v15, 31, v1
    v_lshlrev_b32 v16, 5, v15
    v_lshrrev_b32 v17, 5, v1
    v_lshl_add_u32 v16, v17, 4, v16
    s_mov_b32 s47, {SPIN_MAX}
    """)
    a.label(f"L_{name}_lpoll")
    a(f"""buffer_load_dwordx2 v[28:29], v14, s[20:23], s27 offen sc1
    buffer_load_dwordx4 v[32:35], v16, s[20:23], s28 offen sc1
    s_sub_u32 s47, s47, 1
    s_waitcnt vmcnt(0)
    v_xor_b32 v29, s3, v29
    v_xor_b32 v33, s3, v33
    v_xor_b32 v35, s3, v35
    v_or3_b32 v29, v29, v33, v35
    v_cmp_ne_u32 vcc, 0, v29
    s_cmp_eq_u32 s47, 0
    s_cbranch_scc1 L_{name}_lpolled
    s_cbranch_vccnz L_{name}_lpoll
    """)
    a.label(f"L_{name}_lpolled")
    a(f"""s_barrier
    v_add_f32 v32, v32, v34
    v_and_b32 v36, 0xffff0000, v28        ; sd
    v_mov_b32 v33, v32
    v_lshlrev_b32 v28, 16, v28            ; m
    v_rcp_f32 v45, v36
    v_permlane32_swap_b32 v33, v32
    v_xor_b32 v44, 0x80000000, v28
    v_mul_f32 v46, v36, v36
    v_mul_f32 v45, {fbits(-LOG2E)}, v45
    v_mov_b32 v47, 0
    v_add_f32 v32, v32, v33
    s_lshl_b32 s27, s30, 10
    s_add_u32 s27, s27, {LDS_STAT}
    v_lshl_add_u32 v8, v1, 4, s27
    ds_write_b128 v8, v[44:47]
    s_lshl_b32 s27, s30, 7
    s_add_u32 s27, s27, {LDS_CS}
    v_lshl_add_u32 v8, v15, 2, s27
    ds_write_b32 v8, v32
    s_waitcnt lgkmcnt(0)
    s_barrier
    """)

KRS=544; KBUF=16*KRS; AUXW=18432
def cmul(a, o, x, z, t):
    a(f"v_pk_mul_f32 {v(t,2)}, {v(x+2,2)}, {v(z+2,2)}")
    a(f"v_pk_mul_f32 {v(t+2,2)}, {v(x+2,2)}, {v(z,2)}")
    a(f"v_pk_fma_f32 {v(o+2,2)}, {v(x,2)}, {v(z+2,2)}, {v(t+2,2)}")
    a(f"v_pk_fma_f32 {v(o,2)}, {v(x,2)}, {v(z,2)}, {v(t,2)} neg_lo:[0,0,1] neg_hi:[0,0,1]")
class RowW:
    def __init__(s,a): s.a=a; s.k=0
    def __call__(s, x, buf, row, neg):
        c=96+2*(s.k%4); s.k+=1
        n="-" if neg else ""
        s.a(f"v_cvt_pk_bf16_f32 v{c}, v{x}, {n}v{x+2}")
        s.a(f"v_cvt_pk_bf16_f32 v{c+1}, v{x+1}, {n}v{x+3}")
        s.a(f"ds_write_b64 v14, {v(c,2)} offset:{buf*KBUF+row*KRS}")

def aux_issue(a):
    a("""
    s_load_dwordx8 s[48:55], s[0:1], 8
    s_load_dwordx4 s[56:59], s[0:1], 40
    s_load_dwordx2 s[46:47], s[0:1], 80
    s_lshr_b32 s27, s2, 3
    s_sub_u32 s27, s27, 27
    s_lshl_b32 s27, s27, 3
    s_and_b32 s28, s2, 7
    s_add_u32 s27, s27, s28
    s_lshl_b32 s44, s27, 3
    s_add_u32 s44, s44, s26
    s_lshl_b32 s27, s44, 9
    v_lshl_add_u32 v60, v1, 2, s27
    s_lshl_b32 s27, s44, 2
    v_mov_b32 v61, s27
    s_waitcnt lgkmcnt(0)
    """)
    for c in range(2):
        for k in range(4): a(f"global_load_dword v{212+6*c+k}, v60, s[{48+2*k}:{49+2*k}] offset:{256*c}")
        for k in range(2): a(f"global_load_ushort v{216+6*c+k}, v61, s[{56+2*k}:{57+2*k}] offset:{2*c}")

def kgen(a, opt, name):
    rho=[0,0,1,2,2,2,3,4,4,4,5,6,6,6,7,8]
    rb=0
    for j,r_ in enumerate(rho): rb |= r_<<(4*j)
    a(f"""
    s_mul_i32 s45, s26, {AUXW}
    v_lshl_add_u32 v14, v1, 3, s45
    v_and_b32 v80, 15, v1               ; col/row
    v_lshrrev_b32 v81, 4, v1            ; kg
    v_mul_u32_u24 v15, {KRS}, v80
    v_lshl_add_u32 v21, v81, 4, s45
    v_add_u32 v15, v15, v21
    s_mov_b32 s27, {rb & 0xffffffff}
    s_mov_b32 s28, {rb >> 32}
    v_mov_b32 v82, s27
    v_mov_b32 v83, s28
    v_lshlrev_b32 v84, 2, v80
    v_lshrrev_b64 v[82:83], v84, v[82:83]
    v_and_b32 v82, 15, v82
    v_mul_u32_u24 v16, {KRS}, v82
    v_add_u32 v16, v16, v21
    v_subrev_u32 v17, 16, v1
    v_add_u32 v82, 15, v80
    v_and_b32 v82, 15, v82
    v_add_u32 v82, 48, v82
    v_cmp_gt_u32 vcc, 16, v1
    v_cndmask_b32 v17, v17, v82, vcc
    v_lshlrev_b32 v17, 2, v17
    v_lshlrev_b32 v18, 6, v80
    v_lshl_add_u32 v18, v81, 4, v18     ; 64*col+16*kg
    v_lshl_add_u32 v82, v81, 4, v80
    v_lshl_add_u32 v83, v81, 5, v80
    v_add_u32 v19, 560, v82
    v_add_u32 v20, 608, v82
    v_add_u32 v84, {656-64}, v83
    v_add_u32 v85, {656-64+16}, v83
    v_cmp_gt_u32 vcc, 32, v1
    v_cndmask_b32 v19, v84, v19, vcc
    v_cndmask_b32 v20, v85, v20, vcc
    v_lshlrev_b32 v19, 2, v19
    v_lshlrev_b32 v20, 2, v20
    s_mul_i32 s36, s44, 6144
    s_add_u32 s36, s36, {WS_KT}
    s_mov_b32 s37, 0
    s_waitcnt vmcnt(0)
    """)
    a(f"""
    v_lshrrev_b32 v82, 3, v1
    v_mul_u32_u24 v82, 1280, v82
    v_and_b32 v83, 7, v1
    v_lshl_add_u32 v38, v83, 4, v82
    """)
    srd(a,48,46,W_BYTES)
    a.label(f"L_{name}_kloop")
    P=212
    a(f"""
    v_lshlrev_b32 v80, 16, v{P}
    v_and_b32 v81, 0xffff0000, v{P}
    v_lshlrev_b32 v82, 16, v{P+4}
    v_mul_f32 v80, {fbits(LOG2E)}, v80
    v_mul_f32 v81, {fbits(LOG2E)}, v81
    v_mul_f32 v82, {fbits(LOG2E)}, v82
    v_exp_f32 v80, v80
    v_exp_f32 v81, v81
    v_exp_f32 v82, v82
    v_lshlrev_b32 v84, 16, v{P+1}
    v_and_b32 v85, 0xffff0000, v{P+1}
    v_lshlrev_b32 v40, 16, v{P+2}
    v_and_b32 v41, 0xffff0000, v{P+2}
    v_lshlrev_b32 v42, 16, v{P+3}
    v_and_b32 v43, 0xffff0000, v{P+3}
    v_cvt_pk_bf16_f32 v81, v80, v81
    v_cvt_pk_bf16_f32 v82, v82, v82
    v_lshlrev_b32 v80, 16, v81
    v_and_b32 v81, 0xffff0000, v81
    v_lshlrev_b32 v82, 16, v82           ; dt
    v_lshlrev_b32 v21, 16, v{P+5}        ; D
    v_add_f32 v83, v82, v82              ; 2dt
    v_pk_mul_f32 v[80:81], v[80:81], v[82:83] op_sel:[0,0] op_sel_hi:[1,0]
    v_pk_mul_f32 v[84:85], v[84:85], v[82:83] op_sel:[0,0] op_sel_hi:[1,0]
    v_pk_mul_f32 v[40:41], v[40:41], v[82:83] op_sel:[0,1] op_sel_hi:[1,1]
    v_pk_mul_f32 v[42:43], v[42:43], v[82:83] op_sel:[0,1] op_sel_hi:[1,1]
    """)
    for zi,p in ((22,1),(26,16),(30,256)):
        for h in range(2):
            a(f"v_mul_f32 v{88+h}, {fbits(-LOG2E*p)}, v{80+h}")
            a(f"v_mul_f32 v{90+h}, {fbits(p/(2*3.141592653589793))}, v{84+h}")
        for h in range(2):
            a(f"v_exp_f32 v{88+h}, v{88+h}")
            a(f"v_fract_f32 v{90+h}, v{90+h}")
        for h in range(2):
            a(f"v_cos_f32 v{zi+h}, v{90+h}")
            a(f"v_sin_f32 v{zi+2+h}, v{90+h}")
        a(f"v_pk_mul_f32 {v(zi,2)}, {v(zi,2)}, v[88:89]")
        a(f"v_pk_mul_f32 {v(zi+2,2)}, {v(zi+2,2)}, v[88:89]")
    W=RowW(a)
    def G(e): return 40+2*e if e%2==0 else 76
    a("v_mov_b32 v92, 0x3f80\nv_mov_b32 v93, 0x3f80\nds_write_b64 v14, v[92:93]")
    W(26,0,1,False); W(G(0),1,0,True)
    for j in range(1,17):
        cmul(a,G(j),G(j-1),22,80)
        if 2<=j<=15: cmul(a,34,26 if j==2 else 34,26,84)
        if j<=15: W(G(j),1,j,True)
        if 2<=j<=15: W(34,0,j,False)
        if j==4:
            a(f"s_cmp_lg_u32 s37, 0\ns_cbranch_scc1 L_{name}_nopk")
            for u in range(2):
                a(f"""s_add_u32 s27, s44, {320*u}
                s_mul_hi_u32 s28, s27, 429496730
                s_mul_i32 s34, s28, 10
                s_sub_u32 s34, s27, s34
                s_mul_i32 s28, s28, {32*1280}
                s_lshl_b32 s34, s34, 7
                s_add_u32 s28, s28, s34""")
                for i in range(4):
                    a(f"s_add_u32 s34, s28, {i*8*1280}\nbuffer_load_dwordx4 {v(180+16*u+4*i,4)}, v38, s[48:51], s34 offen")
            a.label(f"L_{name}_nopk")
    a("s_waitcnt lgkmcnt(0)")
    for s_ in range(8): a(f"ds_read_b128 {v(104+4*s_,4)}, v15 offset:{64*s_}")
    for s_ in range(7): a(f"ds_read_b128 {v(136+4*s_,4)}, v15 offset:{KBUF+64*s_}")
    for e in range(0,17,2):
        cmul(a,G(e),G(e),30,80+4*((e//2)&1))
        if e==2:
            a("s_waitcnt lgkmcnt(7)"); a(f"ds_read_b128 {v(136+28,4)}, v15 offset:{KBUF+64*7}")
            W(G(0),0,0,True)
        if e>=2: W(G(e),0,e//2,True)
        if e>=2:
            s_=e//2-1
            if e==4: pass
    a("s_waitcnt lgkmcnt(0)")
    def mm(D,s_): a(f"v_mfma_f32_16x16x32_bf16 {v(D,4)}, {v(136+4*s_,4)}, {v(104+4*s_,4)}, " + ("0" if s_==0 else v(D,4)))
    rows=[(q,e) for q in (2,3) for e in (4,8,12,16)]+[(q,e) for q in (4,5,6,7) for e in (8,16)]
    for i,(q,e) in enumerate(rows):
        cmul(a,G(e),G(e),30,80+4*(i&1))
        W(G(e),1,i,True)
        if i<4:
            mm(168,2*i); mm(168,2*i+1)
        if i==4:
            for s_ in range(8): a(f"ds_read_b128 {v(136+4*s_,4)}, v16 offset:{64*s_}")
        if i==8: a("s_waitcnt lgkmcnt(4)")
        if 8<=i<12:
            mm(172,2*(i-8)); mm(172,2*(i-8)+1)
    a("s_waitcnt lgkmcnt(0)")
    for s_ in range(8): a(f"ds_read_b128 {v(136+4*s_,4)}, v15 offset:{KBUF+64*s_}")
    a(f"""
    v_cmp_eq_u32 vcc, 0, v1
    v_cndmask_b32 v21, 0, v21, vcc
    v_add_f32 v168, v168, v21
    ds_bpermute_b32 v80, v17, v171
    ds_bpermute_b32 v81, v17, v175
    s_waitcnt lgkmcnt(2)
    """)
    for s_ in range(8): mm(176,s_)
    a(f"""
    s_waitcnt lgkmcnt(0)
    v_cndmask_b32 v82, v80, 0, vcc
    v_cndmask_b32 v83, v81, v80, vcc
    v_cvt_pk_bf16_f32 v88, v168, v82
    v_cvt_pk_bf16_f32 v89, v169, v168
    v_cvt_pk_bf16_f32 v90, v170, v169
    v_cvt_pk_bf16_f32 v91, v171, v170
    buffer_store_dwordx4 v[88:91], v18, s[20:23], s36 offen offset:64 {ST}
    v_cvt_pk_bf16_f32 v92, v172, v83
    v_cvt_pk_bf16_f32 v93, v173, v172
    v_cvt_pk_bf16_f32 v94, v174, v173
    v_cvt_pk_bf16_f32 v95, v175, v174
    buffer_store_dwordx4 v[92:95], v18, s[20:23], s36 offen offset:{64+1024} {ST}
    v_cvt_pk_bf16_f32 v100, v81, v81
    v_cvt_pk_bf16_f32 v96, v176, v177
    v_cvt_pk_bf16_f32 v97, v178, v179
    v_mov_b32 v101, v100
    v_mov_b32 v102, v100
    v_and_b32 v103, 0xffff0000, v100
    buffer_store_dword v96, v19, s[20:23], s36 offen {ST}
    buffer_store_dword v97, v20, s[20:23], s36 offen {ST}
    s_mov_b64 exec, 1
    buffer_store_dwordx4 v[100:103], v18, s[20:23], s36 offen offset:{64+2048} {ST}
    s_mov_b64 exec, -1
    s_cmp_lg_u32 s37, 0
    s_cbranch_scc1 L_{name}_kdone
    """)
    a(f"""
    v_lshl_add_u32 v80, v1, 4, s45
    v_lshrrev_b32 v81, 2, v1            ; 4kg + r
    v_lshlrev_b32 v81, 7, v81
    v_and_b32 v82, 3, v1
    v_lshl_add_u32 v81, v82, 3, v81
    v_add_u32 v81, s45, v81
    v_lshlrev_b32 v82, 4, v1
    s_waitcnt vmcnt(5)
    """)
    for i in range(8): a(f"ds_write_b128 v80, {v(180+4*i,4)} offset:{1024*i}")
    a("s_waitcnt lgkmcnt(0)")
    for u in range(2):
        for ft in range(4):
            a(f"ds_read_b64_tr_b16 {v(180+16*u+4*ft,2)}, v81 offset:{4096*u+32*ft}")
            a(f"ds_read_b64_tr_b16 {v(182+16*u+4*ft,2)}, v81 offset:{4096*u+32*ft+2048}")
        a(f"""s_add_u32 s27, s44, {320*u}
        s_mul_hi_u32 s28, s27, 429496730      ; ks
        s_mul_i32 s34, s28, 10
        s_sub_u32 s34, s27, s34
        s_lshl_b32 s34, s34, 2                ; g0 = 4*cb
        s_mul_i32 s28, s28, 5120
        s_add_u32 s28, s28, {WS_W2P}
        s_cmp_lt_u32 s27, 540
        s_cselect_b32 s28, s28, {OOB}
        s_waitcnt lgkmcnt(0)""")
        for ft in range(4):
            a(f"""s_add_u32 s27, s34, {ft}
            s_mul_hi_u32 s35, s27, 858993460     ; /5
            s_mul_i32 s35, s35, {54*5-5}
            s_add_u32 s35, s35, s27
            s_lshl_b32 s35, s35, 10
            s_add_u32 s35, s35, s28
            buffer_store_dwordx4 {v(180+16*u+4*ft,4)}, v82, s[20:23], s35 offen {ST}""")
    for k in range(6): a(f"v_mov_b32 v{212+k}, v{218+k}")
    a(f"""s_add_u32 s36, s36, 3072
    s_mov_b32 s37, 1
    s_branch L_{name}_kloop""")
    a.label(f"L_{name}_kdone")

def phase1(a, opt, name, kidx=0, c_tail=None, l_tail=None, aux_tail=None):
    stamp0(a,opt)
    a(f"""
    s_load_dwordx2 s[4:5], s[0:1], 0
    s_load_dwordx4 s[40:43], s[0:1], 64
    s_load_dwordx2 s[6:7], s[0:1], 104
    s_cmp_ge_u32 s2, 256
    s_cbranch_scc1 L_{name}_end
    v_lshrrev_b32 v1, 6, v0
    """)
    decode_ids(a)
    a("""v_readfirstlane_b32 s26, v1
    v_and_b32 v1, 63, v0
    s_waitcnt lgkmcnt(0)""")
    a(f"s_load_dword s3, s[6:7], {WS_EPOCH}")
    srd(a,8,4,X_BYTES); srd(a,12,40,W_BYTES); srd(a,16,42,W_BYTES); srd(a,20,6,WS_SIZE)
    a(f"""s_cmp_ge_u32 s2, 216
    s_cbranch_scc1 L_{name}_aux
    s_cmp_lt_u32 s26, 4
    s_cbranch_scc1 L_{name}_cw""")
    lwave(a,opt,name)
    if l_tail: l_tail(a)
    a("s_endpgm")
    a.label(f"L_{name}_cw")
    ln_issue(a)
    codepf(a,opt,name)
    cwave_setup(a)
    ln_compute(a, 1 if opt.get("codepf") else 0)
    stampx(a,opt,1)
    cwave_loop(a,opt,name)
    epilogue(a,opt)
    stampx(a,opt,5)
    if c_tail: c_tail(a)
    else:
        a(f"s_cmp_lg_u32 s26, 0\ns_cbranch_scc1 L_{name}_end")
        write_stamp(a,opt,kidx)
    a("s_endpgm")
    a.label(f"L_{name}_aux")
    aux_issue(a)
    a(f"s_cmp_ge_u32 s26, 4\ns_cbranch_scc1 L_{name}_aux2")
    ln_issue(a)
    ln_compute(a,0)
    a(f"s_barrier\ns_branch L_{name}_aux3")
    a.label(f"L_{name}_aux2")
    a("s_sub_u32 s30, s26, 4\ns_barrier")
    ln_part2(a)
    make_tag(a)
    a.label(f"L_{name}_aux3")
    stampx(a,opt,1)
    kgen(a,opt,name)
    stampx(a,opt,5)
    if aux_tail: aux_tail(a)
    else:
        a(f"s_cmp_lg_u32 s26, 0\ns_cbranch_scc1 L_{name}_end")
        write_stamp(a,opt,kidx+8)
    a.label(f"L_{name}_end")
    a("s_endpgm")

def codepf(a,opt,name):
    if opt.get("codepf"):
        a(f"""s_getpc_b64 s[46:47]
        s_and_b32 s46, s46, 0xffffff00
        v_lshlrev_b32 v26, 7, v0
        v_min_u32 v26, {opt["codepf"]-128}, v26
        global_load_dword v10, v26, s[46:47]""")
```

```python
from common import *
ST="sc1"
CTAB=3072; CPAD=512; CWAVE=CTAB+CPAD+4096
KF=8
PF=76
ZF=80
BM=120
YA=144
UF=176
BD=200
SF=224
BANDS=[(11,3),(6,5),(3,3),(5,7),(4,9)]
def conv_consts(a):
    a("""v_and_b32 v2, 15, v1
    v_lshrrev_b32 v3, 4, v1
    v_lshlrev_b32 v3, 3, v3""")
    def expand(dst, mulc):
        for s_ in range(4):
            a(f"""v_bfe_u32 v5, v4, {2*s_}, 2
            v_lshl_or_b32 v5, v5, 15, v5
            v_and_b32 v5, 0x10001, v5
            v_mul_u32_u24 v{dst+s_}, {mulc}, v5""")
    for i,(a0,w) in enumerate(BANDS):
        a(f"""v_mov_b32 v4, {((1<<w)-1)<<a0}
        v_lshlrev_b32 v4, v2, v4
        v_lshrrev_b32 v4, v3, v4""")
        expand(BM+4*i, "0x3f80")
    a(f"""v_mov_b32 v4, {3<<12}
    v_lshlrev_b32 v4, v2, v4
    v_lshrrev_b32 v4, v3, v4""")
    expand(BM+20, "0xffff")

def conv_load(a, ldsbase, ch, flags=""):
    zero=[(0,4),(133,140),(148,152),(160,164),(180,192)]
    a(f"v_lshlrev_b32 v2, 4, v1")
    a(f"v_mov_b32 v7, {OOB}")
    a("v_cmp_gt_u32 vcc, 4, v1\nv_cndmask_b32 v3, v2, v7, vcc")
    m=0
    for lo,hi in zero[1:]:
        for c in range(lo,hi): m |= 1<<(c-128)
    a(f"s_mov_b32 vcc_lo, {m & 0xffffffff}\ns_mov_b32 vcc_hi, {m>>32}\nv_cndmask_b32 v4, v2, v7, vcc")
    a(f"""s_mul_i32 s27, {ch}, 3072
    s_add_u32 s27, s27, {WS_KT}
    s_mov_b32 m0, {ldsbase}
    s_lshr_b32 s28, {ch}, 2
    buffer_load_dwordx4 v3, s[20:23], s27 offen {flags} lds
    buffer_load_dwordx4 v2, s[20:23], s27 offen offset:1024 {flags} lds
    buffer_load_dwordx4 v4, s[20:23], s27 offen offset:2048 {flags} lds
    s_lshl_b32 s28, s28, 14
    s_and_b32 s34, {ch}, 3
    s_lshl_b32 s34, s34, 4
    s_add_u32 s28, s28, s34
    s_add_u32 s28, s28, {WS_XNT}
    v_lshlrev_b32 v5, 6, v1
    """)
    for i in range(4):
        a(f"s_add_u32 m0, {ldsbase}, {CTAB+CPAD+1024*i}\ns_add_u32 s34, s28, {4096*i}\nbuffer_load_dwordx4 v5, s[20:23], s34 offen {flags} lds")
    a(f"""v_lshl_add_u32 v6, v1, 3, {ldsbase}
    v_mov_b64 v[236:237], 0
    ds_write_b64 v6, v[236:237] offset:{CTAB}""")

def conv_compute(a, ldsbase, ch):
    a(f"""v_and_b32 v2, 15, v1
    v_lshrrev_b32 v3, 4, v1
    v_lshlrev_b32 v4, 3, v3
    v_sub_u32 v4, v2, v4
    v_lshl_add_u32 v4, v4, 2, {ldsbase}
    v_lshlrev_b32 v5, 2, v3
    v_sub_u32 v5, v2, v5
    v_lshl_add_u32 v5, v5, 2, {ldsbase}
    v_add_u32 v5, {4*(560-3)}, v5
    v_lshlrev_b32 v6, 5, v2
    v_lshl_add_u32 v6, v3, 4, v6
    v_add_u32 v6, {ldsbase}, v6
    v_add_u32 v238, {4*(16+16-6)}, v4
    v_add_u32 v239, {4*(16+16-6+224)}, v4
    v_add_u32 v240, {4*(16+16-6+448)}, v4
    v_mov_b32 v241, {ldsbase}
    v_lshlrev_b32 v7, 5, v2
    v_lshl_add_u32 v7, v3, 3, v7
    s_lshl_b32 s27, {ch}, 12
    s_add_u32 s27, s27, {WS_YT}
    """)
    UB=CTAB+CPAD
    lg=[]
    def issue(txt,key):
        if len(lg)>=15: wait_for(lg[len(lg)-15])
        a(txt); lg.append(key)
    def wait_for(key):
        if key not in lg: return
        i=len(lg)-1-lg[::-1].index(key); n=len(lg)-1-i
        a(f"s_waitcnt lgkmcnt({n})"); del lg[:i+1]
    lg.append("zero")
    def rdK(j):
        rel=(528-32*j)-16
        b=rel//224; o=rel-224*b
        issue(f"ds_read2_b32 {v(KF+4*j,2)}, v{238+b} offset0:{o+6} offset1:{o+4}",("K",j,0))
        issue(f"ds_read2_b32 {v(KF+4*j+2,2)}, v{238+b} offset0:{o+2} offset1:{o}",("K",j))
    def rdZ(i):
        tb,d = [(0,0),(0,1),(0,2),(48,0),(48,1),(48,2),(96,0),(96,1),(96,2),(96,3)][i]
        o=tb+16*d
        issue(f"ds_read2_b32 {v(ZF+4*i,2)}, v5 offset0:{o+3} offset1:{o+2}",("Z",i,0))
        issue(f"ds_read2_b32 {v(ZF+4*i+2,2)}, v5 offset0:{o+1} offset1:{o}",("Z",i))
    useq=[]
    for tau in range(8):
        for i in range(8): useq.append(256*tau-240+32*i)
        if tau<6: useq.append(256*tau-24)
    NR=6
    def rdU(n):
        if n<len(useq): issue(f"ds_read_b128 {v(UF+4*(n%NR),4)}, v6 offset:{UB+2*useq[n]}",("U",n))
    wait_for("zero")
    started=set()
    def mm(T,A,B):
        C=v(YA+4*T,4); a(f"v_mfma_f32_16x16x32_bf16 {C}, {v(A,4)}, {v(B,4)}, " + (C if T in started else "0")); started.add(T)
    korder=[]
    for i in range(8): korder += [9+i,1+i]
    korder.append(0)
    pend=[("K",j) for j in korder]+[("B",0)]+[("Z",i) for i in range(10)]
    def pump(k):
        for _ in range(k):
            if not pend: return
            t,i=pend.pop(0)
            if t=="K": rdK(i)
            elif t=="Z": rdZ(i)
            else: issue(f"ds_read_b32 v242, v241 offset:{4*(608+31)}",("B",0))
    rdU(0); pump(2); rdU(1); pump(2); rdU(2); rdU(3); rdU(4)
    later=[]
    for n,o in enumerate(useq):
        tau=(o+240)//256 if (o+240)%32==0 else (o+24)//256
        U=UF+4*(n%NR)
        wait_for(("U",n))
        if (o+240)%32==0:
            for T in range(8):
                c=o-256*T
                if -528<=c<=-16:
                    j=(c+528)//32
                    while ("K",j) in pend: pump(1)
                    wait_for(("K",j)); mm(T,KF+4*j,U)
            pump(2)
            if (o+16)%256==0:
                if tau<4:
                    if tau==0:
                        while ("B",0) in pend: pump(1)
                        wait_for(("B",0))
                        a("v_perm_b32 v242, v242, v242, s28" if False else "v_and_b32 v242, 0xffff0000, v242\nv_lshrrev_b32 v243, 16, v242\nv_or_b32 v242, v242, v243")
                        for s_ in range(4): a(f"v_and_b32 v{PF+s_}, v242, v{BM+20+s_}")
                    mm(tau+4,PF,U)
                if tau<6:
                    for i,b in ((0,0),(1,1),(2,2))+(((4,3),) if tau<4 else ()):
                        a(f"v_mfma_f32_16x16x32_bf16 {v(BD+4*i,4)}, {v(U,4)}, {v(BM+4*b,4)}, 0")
                def fin(T=tau):
                    a(f"v_cvt_pk_bf16_f32 v{244+2*(T&1)}, v{YA+4*T}, v{YA+4*T+1}")
                    a(f"v_cvt_pk_bf16_f32 v{245+2*(T&1)}, v{YA+4*T+2}, v{YA+4*T+3}")
                    a(f"buffer_store_dwordx2 {v(244+2*(T&1),2)}, v7, s[20:23], s27 offen offset:{512*T} {ST}")
                later.append(None); later.append(None); later.append(fin)
        else:
            a(f"v_mfma_f32_16x16x32_bf16 {v(BD+12,4)}, {v(U,4)}, {v(BM+4,4)}, 0")
            if tau<4: a(f"v_mfma_f32_16x16x32_bf16 {v(BD+20,4)}, {v(U,4)}, {v(BM+16,4)}, 0")
            def cv(tau=tau):
                for p in range(3 if tau<4 else 2):
                    for s_ in range(4): a(f"v_cvt_pk_bf16_f32 v{SF+4*p+s_}, v{BD+8*p+s_}, v{BD+8*p+4+s_}")
            def zz(tau=tau):
                while pend: pump(1)
                wait_for(("Z",9))
                for d in range(3):
                    if tau+2+d<8:
                        mm(tau+2+d,SF,ZF+4*d); mm(tau+2+d,SF+4,ZF+4*(3+d))
                for d in range(4):
                    if tau<4 and tau+4+d<8: mm(tau+4+d,SF+8,ZF+4*(6+d))
            later.append(cv); later.append(zz)
        rdU(n+5)
        if later:
            f=later.pop(0)
            if f: f()
    while later:
        f=later.pop(0)
        if f: f()

PRS=336; PSZ=64*PRS
def g2_ids(a):
    a("""s_and_b32 s27, s2, 7
    s_lshr_b32 s28, s2, 3
    s_lshr_b32 s24, s27, 1
    s_lshl_b32 s24, s24, 3
    s_and_b32 s25, s28, 7
    s_add_u32 s24, s24, s25
    s_and_b32 s25, s27, 1
    s_lshl_b32 s25, s25, 2
    s_lshr_b32 s28, s28, 3
    s_add_u32 s25, s25, s28""")
G2A=176
def gemm2_stream(a, opt, name, NB=4, flags=""):
    a(f"""v_lshlrev_b32 v2, 4, v1
    s_mul_i32 s30, s24, {54*4096}
    s_lshl_b32 s27, s26, 12
    s_add_u32 s30, s30, s27
    s_add_u32 s30, s30, {WS_H}
    s_mul_i32 s31, s25, {54*5120}
    s_mul_i32 s27, s26, 5120
    s_add_u32 s31, s31, s27
    s_add_u32 s31, s31, {WS_W2P}""")
    NS=14
    def buf(i): return 8+36*(i%NB)
    def load(i):
        b=buf(i)
        a(f"s_add_u32 s32, s30, {i*4*4096}\ns_add_u32 s33, s31, {i*4*5120}")
        if i==NS-1:
            a(f"s_cmp_lt_u32 s26, 2\ns_cselect_b32 s32, s32, {OOB}\ns_cselect_b32 s33, s33, {OOB}")
        a(f"s_add_u32 s34, s33, 4096")
        out=[]
        for t in range(4):
            out.append(f"buffer_load_dwordx4 {v(b+4*t,4)}, v2, s[20:23], s32 offen offset:{1024*t} {flags}")
        for d in range(5):
            out.append(f"buffer_load_dwordx4 {v(b+16+4*d,4)}, v2, s[20:23], {'s33' if d<4 else 's34'} offen offset:{1024*(d&3)} {flags}")
        return out
    for i in range(NB-1):
        for l in load(i): a(l)
    for i in range(NS):
        b=buf(i)
        rem=min(NS-1-i, NB-2)
        a(f"s_waitcnt vmcnt({9*rem})")
        nl = load(i+NB-1) if i+NB-1<NS else []
        k=0
        for t in range(4):
            for d in range(5):
                C=v(G2A+4*(t*5+d),4)
                a(f"v_mfma_f32_16x16x32_bf16 {C}, {v(b+16+4*d,4)}, {v(b+4*t,4)}, " + ("0" if i==0 else C))
                if k%2==1 and k//2<len(nl): a(nl[k//2])
                k+=1

def g2_write_partials(a, pbase):
    a(f"""v_and_b32 v3, 15, v1
    v_mul_u32_u24 v3, {PRS}, v3
    v_lshrrev_b32 v4, 4, v1
    v_lshl_add_u32 v3, v4, 4, v3
    s_mul_i32 s27, s26, {PSZ}
    s_add_u32 s27, s27, {pbase}
    v_add_u32 v3, s27, v3""")
    for t in range(4):
        for d in range(5):
            a(f"ds_write_b128 v3, {v(G2A+4*(t*5+d),4)} offset:{t*16*PRS+d*64}")
    a("s_waitcnt lgkmcnt(0)")

YRS=176
def y_gather(a, ybase, ytbase, lw="s30", flags=""):
    a(f"""v_lshrrev_b32 v2, 3, v1
    v_lshlrev_b32 v2, 12, v2
    v_and_b32 v3, 7, v1
    v_lshl_add_u32 v2, v3, 4, v2
    s_mul_i32 s27, s25, 80
    s_mul_i32 s28, {lw}, 20
    s_add_u32 s27, s27, s28
    s_lshl_b32 s27, s27, 12
    s_lshl_b32 s28, s24, 7
    s_add_u32 s27, s27, s28
    s_add_u32 s27, s27, {WS_YT}
    s_mul_i32 s35, {lw}, 3072
    s_add_u32 s35, s35, {ybase}""")
    for i in range(3):
        a(f"s_add_u32 m0, s35, {1024*i}\ns_add_u32 s34, s27, {i*8*4096}\nbuffer_load_dwordx4 v2, s[20:23], s34 offen {flags} lds")
    a(f"""v_lshrrev_b32 v4, 2, v1
    v_and_b32 v4, 3, v4                  ; r (d row)
    v_lshlrev_b32 v4, 7, v4
    v_lshrrev_b32 v5, 4, v1
    v_lshl_add_u32 v4, v5, 5, v4
    v_and_b32 v5, 3, v1
    v_lshl_add_u32 v4, v5, 3, v4
    v_add_u32 v4, s35, v4
    v_mul_u32_u24 v5, {YRS}, v1
    s_mul_i32 s28, {lw}, 40
    s_add_u32 s28, s28, {ytbase}
    v_add_u32 v5, s28, v5
    s_waitcnt vmcnt(0)""")
    for i in range(5): a(f"ds_read_b64_tr_b16 {v(8+2*i,2)}, v4 offset:{512*i}")
    a("s_waitcnt lgkmcnt(0)")
    for i in range(5): a(f"ds_write_b64 v5, {v(8+2*i,2)} offset:{8*i}")
    a("s_waitcnt lgkmcnt(0)")

def final_setup(a, R=160):
    for k in range(2):
        a(f"""v_add_u32 v{R+8}, {512*k}, v0
        v_mul_u32_u24 v{R+9}, 6554, v{R+8}
        v_lshrrev_b32 v{R+9}, 16, v{R+9}            ; t
        v_mul_u32_u24 v{R+14}, 10, v{R+9}
        v_sub_u32 v{R+14}, v{R+8}, v{R+14}          ; chunk
        v_mul_u32_u24 v{R+10+k}, 1280, v{R+9}
        v_lshl_add_u32 v{R+10+k}, v{R+14}, 4, v{R+10+k}
        v_lshl_add_u32 v{R+12+k}, v{R+14}, 11, v{R+9}""")
    a(f"""v_mov_b32 v{R+14}, {OOB}
    v_cmp_gt_u32 vcc, 128, v0
    v_cndmask_b32 v{R+11}, v{R+14}, v{R+11}, vcc
    s_mul_i32 s36, s24, {64*1280}
    s_mul_i32 s27, s25, 160
    s_add_u32 s36, s36, s27
    buffer_load_dwordx4 {v(R,4)}, v{R+10}, s[8:11], s36 offen
    buffer_load_dwordx4 {v(R+4,4)}, v{R+11}, s[8:11], s36 offen""")

def final(a, name, pbase, ytbase, R=160):
    for k in range(2):
        if k==1: a(f"s_cmp_ge_u32 s26, 2\ns_cbranch_scc1 L_{name}_fin")
        a(f"""v_and_b32 v2, 0x7ff, v{R+12+k}
        v_lshrrev_b32 v3, 11, v{R+12+k}
        v_mul_u32_u24 v4, {PRS}, v2
        v_lshl_add_u32 v4, v3, 5, v4
        v_add_u32 v4, {pbase}, v4
        v_mul_u32_u24 v5, {YRS}, v2
        v_lshl_add_u32 v5, v3, 4, v5
        v_add_u32 v5, {ytbase}, v5
        ds_read_b128 v[40:43], v5""")
        for p in range(4):
            a(f"ds_read_b128 {v(8+8*p,4)}, v4 offset:{p*PSZ}")
            a(f"ds_read_b128 {v(12+8*p,4)}, v4 offset:{p*PSZ+16}")
        a("s_waitcnt vmcnt(0) lgkmcnt(8)")
        for i in range(4):
            a(f"v_lshlrev_b32 v{44+2*i}, 16, v{40+i}\nv_and_b32 v{45+2*i}, 0xffff0000, v{40+i}")
            a(f"v_lshlrev_b32 v{52+2*i}, 16, v{R+4*k+i}\nv_and_b32 v{53+2*i}, 0xffff0000, v{R+4*k+i}")
        for i in range(4): a(f"v_pk_add_f32 {v(44+2*i,2)}, {v(44+2*i,2)}, {v(52+2*i,2)}")
        a("s_waitcnt lgkmcnt(0)")
        for i in range(4):
            a(f"v_pk_add_f32 {v(8+2*i,2)}, {v(8+2*i,2)}, {v(16+2*i,2)}")
            a(f"v_pk_add_f32 {v(24+2*i,2)}, {v(24+2*i,2)}, {v(32+2*i,2)}")
        for i in range(4): a(f"v_pk_add_f32 {v(8+2*i,2)}, {v(8+2*i,2)}, {v(24+2*i,2)}")
        for i in range(4): a(f"v_pk_add_f32 {v(8+2*i,2)}, {v(8+2*i,2)}, {v(44+2*i,2)}")
        for i in range(4): a(f"v_cvt_pk_bf16_f32 v{60+i}, v{8+2*i}, v{9+2*i}")
        a(f"buffer_store_dwordx4 v[60:63], v{R+10+k}, s[12:15], s36 offen")
    a.label(f"L_{name}_fin")
```

```python
import sys
from common import *
import phase1 as p1, phase2 as p2
HEAD=open("parallel_sum__ssm_conv_s4d__glu_gated_swiglu__prompt.s.ref").read().split("; Override launch")[0]
def k_phase1(name,opt,kidx):
    a=Asm(); p1.phase1(a,opt,name,kidx); return kernel_text(name,a.finalize(name=name))
def small_prologue(a,opt,name,nwg):
    stamp0(a,opt)
    a(f"""s_load_dwordx2 s[4:5], s[0:1], 0
    s_load_dwordx2 s[40:41], s[0:1], 88
    s_load_dwordx2 s[6:7], s[0:1], 104
    s_cmp_ge_u32 s2, {nwg}
    s_cbranch_scc1 L_{name}_end
    v_lshrrev_b32 v1, 6, v0
    s_nop 0
    v_readfirstlane_b32 s26, v1
    v_and_b32 v1, 63, v0
    s_waitcnt lgkmcnt(0)""")
    srd(a,8,4,X_BYTES); srd(a,12,40,X_BYTES); srd(a,20,6,WS_SIZE)
def k_conv(name,opt,kidx):
    a=Asm(); small_prologue(a,opt,name,160)
    a(f"s_lshl_b32 s44, s2, 2\ns_add_u32 s44, s44, s26\ns_mul_i32 s45, s26, {p2.CWAVE}")
    p2.conv_load(a,"s45","s44")
    a(f"s_load_dword s3, s[6:7], {WS_EPOCH}")
    p2.conv_consts(a)
    a("s_waitcnt vmcnt(0) lgkmcnt(0)")
    stampx(a,opt,1)
    if opt.get("stamp"): a("s_waitcnt lgkmcnt(0)")
    p2.conv_compute(a,"s45","s44")
    stampx(a,opt,5)
    a(f"s_cmp_lg_u32 s26, 0\ns_cbranch_scc1 L_{name}_end")
    write_stamp(a,opt,kidx)
    a.label(f"L_{name}_end"); a("s_endpgm")
    return kernel_text(name,a.finalize(name=name))
def k_gemm2(name,opt,kidx):
    a=Asm(); small_prologue(a,opt,name,256)
    p2.g2_ids(a)
    PB=0; YB=4*p2.PSZ; YTB=YB+12288
    a(f"s_cmp_ge_u32 s26, 4\ns_cbranch_scc1 L_{name}_lw")
    p2.gemm2_stream(a,opt,name)
    stampx(a,opt,3)
    p2.final_setup(a)
    p2.g2_write_partials(a,PB)
    a(f"s_branch L_{name}_join")
    a.label(f"L_{name}_lw")
    a("s_sub_u32 s30, s26, 4")
    p2.y_gather(a,YB,YTB)
    p2.final_setup(a)
    a(f"""s_load_dword s3, s[6:7], {WS_EPOCH}
    s_waitcnt lgkmcnt(0)""")
    p1.make_tag(a)
    a(f"""s_lshl_b32 s27, s2, 2
    s_add_u32 s27, s27, s30
    s_cmp_eq_u32 s27, 0
    s_cselect_b32 s27, {WS_EPOCH}, {OOB}
    v_mov_b32 v2, s3
    v_mov_b32 v3, 0
    buffer_store_dword v2, v3, s[20:23], s27 offen""")
    a.label(f"L_{name}_join")
    a("s_barrier")
    stampx(a,opt,4)
    if opt.get("stamp"): a("s_waitcnt lgkmcnt(0)")
    p2.final(a,name,PB,YTB)
    stampx(a,opt,5)
    a(f"s_cmp_lg_u32 s26, 0\ns_cbranch_scc1 L_{name}_end")
    write_stamp(a,opt,kidx)
    a.label(f"L_{name}_end"); a("s_endpgm")
    return kernel_text(name,a.finalize(name=name))
def build_split(fn,opt,pre=None):
    ks=[("p1_kernel",256,512,163840,k_phase1),("conv_kernel",160,256,4*p2.CWAVE,k_conv),("g2_kernel",256,512,4*p2.PSZ+12288+64*p2.YRS,k_gemm2)]
    if pre: ks=pre+ks
    hdr=HEAD+"".join(f"; @launch kernel={n} grid=({g},1,1) block=({b},1,1) lds={l}\n" for n,g,b,l,_ in ks)
    hdr+='.amdgcn_target "amdgcn-amd-amdhsa--gfx950"\n.text\n'
    open(fn,"w").write(hdr+"".join(f(n,opt,i) for i,(n,g,b,l,f) in enumerate(ks)))
if __name__=="__main__":
    build_split("../t_split.s",dict(stamp=True,codepf=16384))
    build_split("../v1.s",dict(codepf=16384))
```

```python
import re

TRANS = ("v_exp_f32","v_log_f32","v_rcp_f32","v_rsq_f32","v_sqrt_f32","v_sin_f32","v_cos_f32","v_rcp_iflag_f32")
REG_RE = re.compile(r"^(-|\|)?(abs\()?([vsa])(\d+|\[(\d+):(\d+)\])\)?\|?$")

def regs_of(tok):
    tok = tok.strip()
    if tok in ("vcc",): return [("s",106),("s",107)]
    if tok == "vcc_lo": return [("s",106)]
    if tok == "vcc_hi": return [("s",107)]
    if tok == "exec": return [("s",126),("s",127)]
    if tok == "exec_lo": return [("s",126)]
    if tok == "exec_hi": return [("s",127)]
    if tok == "m0": return [("s",124)]
    m = REG_RE.match(tok)
    if not m: return []
    f = m.group(3)
    if m.group(5) is not None:
        return [(f,i) for i in range(int(m.group(5)), int(m.group(6))+1)]
    return [(f,int(m.group(4)))]

def split_ops(s):
    out=[]; depth=0; cur=""
    for ch in s:
        if ch in "[(": depth+=1
        if ch in "])": depth-=1
        if ch=="," and depth==0:
            out.append(cur.strip()); cur=""
        else: cur+=ch
    if cur.strip(): out.append(cur.strip())
    return out

class Ins:
    def __init__(self, text):
        self.text = text
        t = text.split(";")[0].strip()
        self.label = t.endswith(":")
        self.dst=[]; self.src=[]; self.kind="other"; self.mn=""
        self.srcA=[]; self.srcB=[]; self.srcC=[]; self.passes=0
        self.dpp=False; self.ldsdma=False; self.wide_store=False; self.data=[]
        if self.label or not t or t.startswith("."):
            self.kind="meta"; return
        parts = t.split(None,1)
        mn = parts[0]; self.mn = mn
        rest = parts[1] if len(parts)>1 else ""
        ops = split_ops(rest)
        mods=[]
        if ops:
            last = ops[-1].split()
            ops[-1] = last[0] if last else ""
            mods = last[1:]
        self.ops=ops; self.mods=mods
        base = re.sub(r"_(e32|e64|dpp|sdwa)$","",mn)
        self.base=base
        R = [regs_of(o) for o in ops]
        if mn.startswith("v_mfma"):
            self.kind="mfma"; self.dst=R[0]; self.srcA=R[1]; self.srcB=R[2]; self.srcC=R[3]
            self.src=R[1]+R[2]+R[3]
            self.passes = 8 if "32x32" in mn else 4
        elif mn.startswith("v_"):
            self.kind="valu"
            self.dpp = mn.endswith("_dpp") or any(m.startswith(("row_","quad_perm","wave_")) for m in mods)
            if base.startswith("v_cmp"):
                self.dst=R[0]; self.src=sum(R[1:],[])
                if base.startswith("v_cmpx"): self.dst=self.dst+[("s",126),("s",127)]
            elif base in ("v_permlane32_swap_b32","v_permlane16_swap_b32","v_swap_b32"):
                self.dst=R[0]+R[1]; self.src=R[0]+R[1]
            elif base in ("v_add_co_u32","v_sub_co_u32","v_subrev_co_u32","v_addc_co_u32","v_subb_co_u32","v_mad_u64_u32","v_div_scale_f32"):
                self.dst=R[0]+R[1]; self.src=sum(R[2:],[])
            else:
                self.dst=R[0]; self.src=sum(R[1:],[])
                if base in ("v_fmac_f32","v_dot2c_f32_bf16","v_pk_fmac_f16","v_writelane_b32") or self.dpp or mn.endswith("_sdwa"):
                    self.src = self.src + R[0]
                if base=="v_cndmask_b32" and len(ops)==3: self.src += [("s",106),("s",107)]
        elif mn.startswith("ds_"):
            self.kind="ds"
            if mn.startswith(("ds_read","ds_bpermute","ds_permute","ds_swizzle")) or "_rtn" in mn:
                self.dst=R[0]; self.src=sum(R[1:],[])
                if "d16" in mn: self.src += R[0]
            else:
                self.src=sum(R,[])
        elif mn.startswith(("buffer_","global_","flat_")):
            self.kind="vmem"
            if mn.startswith(("buffer_wbl2","buffer_inv")): pass
            elif "lds" in mods or "_lds_" in mn:
                self.ldsdma=True; self.src=sum(R,[])+[("s",124)]
            elif "_load" in mn:
                self.dst=R[0]; self.src=sum(R[1:],[])
                if "d16" in mn: self.src += R[0]
            elif "_atomic" in mn and "sc0" in mods:
                self.dst=R[0]; self.src=sum(R,[]) if mn.startswith("buffer") else sum(R[1:],[])
            else:
                self.src=sum(R,[])
                self.data = R[0] if mn.startswith("buffer") else R[1]
                self.wide_store = ("x4" in mn or "x3" in mn)
        elif mn.startswith(("s_load","s_buffer_load","s_memtime","s_memrealtime")):
            self.kind="smem"; self.dst=R[0]; self.src=sum(R[1:],[])
        elif mn.startswith("s_"):
            self.kind="salu"
            if mn in ("s_waitcnt","s_nop","s_barrier","s_endpgm","s_sleep","s_setprio","s_branch") or mn.startswith("s_cbranch"):
                self.kind="ctl"
            elif mn.startswith("s_cmp") or mn.startswith("s_bitcmp"):
                self.src=sum(R,[])
            else:
                self.dst=R[0] if R else []; self.src=sum(R[1:],[])
                if "saveexec" in mn: self.dst=self.dst+[("s",126),("s",127)]
                if mn in ("s_addk_i32","s_mulk_i32"): self.src+=R[0]
    def states(self):
        if self.kind=="meta": return 0
        if self.mn=="s_nop": return int(self.ops[0],0)+1
        return 1

def need_between(p, c):
    n=0
    pd=set(p.dst);
    cs=set(c.src); cd=set(c.dst)
    if p.kind=="valu":
        pv={r for r in pd if r[0]=="v"}; ps={r for r in pd if r[0]=="s"}
        if c.kind=="mfma" and pv & cs: n=max(n,2)
        if c.kind=="mfma" and (("s",126) in ps): n=max(n,4)
        if c.kind=="valu":
            if c.dpp and pv & cs: n=max(n,2)
            if c.dpp and ("s",126) in ps: n=max(n,5)
            if c.base.startswith("v_permlane") and pv & cs: n=max(n,2)
            if c.base.startswith("v_permlane") and ("s",126) in ps: n=max(n,4)
            if c.base in ("v_readfirstlane_b32","v_readlane_b32") and pv & cs: n=max(n,1)
            if c.base in ("v_readfirstlane_b32","v_readlane_b32","v_writelane_b32") and ("s",126) in ps: n=max(n,4)
            if ps & cs:
                n=max(n,4 if c.base in ("v_readlane_b32","v_writelane_b32","v_div_fmas_f32") else 2)
            if p.base in TRANS and (pv & cs): n=max(n,1)
            if (p.mn.endswith("_sdwa") or any(m.startswith("op_sel") for m in p.mods) and not p.base.startswith("v_pk_")) and (pv & (cs|cd)): n=max(n,1)
            if p.base.startswith("v_dot") and (pv & (cs|cd)):
                if c.base==p.base and not (pv & set(sum([regs_of(o) for o in c.ops[1:3]],[]))): pass
                else: n=max(n,3)
        if c.kind=="vmem" and ps & cs: n=max(n,5)
        if c.kind in ("salu","smem") and ps & cs: n=max(n,1)
        if p.base.startswith("v_dot") and c.kind in("vmem","ds","mfma") and pv & cs: n=max(n,3)
    if p.kind=="mfma":
        P=p.passes
        if c.kind=="mfma":
            if pd & set(c.srcA+c.srcB): n=max(n, {4:8,8:12}[P])
            if pd & set(c.srcC):
                if not (c.srcC==p.dst and c.passes==P): n=max(n,{4:6,8:10}[P])
            elif pd & cd: n=max(n,{4:6,8:10}[P])
        elif c.kind in ("valu","vmem","ds"):
            if pd & (cs|cd): n=max(n,{4:8,8:12}[P])
            if c.kind=="valu" and set(p.srcC) & cd: n=max(n,{4:3,8:7}[P])
    if p.kind=="salu":
        if ("s",124) in pd and (c.ldsdma or c.mn.startswith("s_movrel") or "addtid" in c.mn): n=max(n,1)
    if p.kind=="vmem" and p.wide_store:
        if set(p.data) & cd: n=max(n,2)
    if p.kind=="ds" and p.mn in ("ds_write_b128","ds_write_b96","ds_write2_b64"):
        if c.kind=="valu" and set(p.src) & cd: n=max(n,2)
    return n

class Asm:
    def __init__(self):
        self.lines=[]
    def __call__(self, text):
        for l in text.split("\n"):
            l=l.strip()
            if l and not l.startswith(";"): self.lines.append(l)
    def label(self, name): self.lines.append(name+":")
    def extend(self, other): self.lines += other.lines
    def finalize(self, check_wait=True, name=""):
        out=[]; hist=[]
        pos=0
        for l in self.lines:
            c=Ins(l)
            if c.kind!="meta":
                need=0
                for (p,pp) in reversed(hist):
                    dist = pos-pp-1+0
                    if dist>=20: break
                    nb=need_between(p,c)
                    if nb>dist: need=max(need, nb-dist)
                while need>0:
                    k=min(need,16)
                    nop=Ins(f"s_nop {k-1}")
                    out.append(nop); hist.append((nop,pos+k-1)); pos+=k; need-=k
                hist.append((c,pos+c.states()-1)); pos+=c.states()
                if len(hist)>40: hist=hist[-40:]
            out.append(c)
        if check_wait: check_waitcnt(out, name)
        return "\n".join(("" if i.label else "  ")+i.text for i in out)+"\n"

def check_waitcnt(ins, name=""):
    vm=[]; lg=[]
    errs=0
    for idx,i in enumerate(ins):
        if i.kind=="meta": continue
        if i.mn=="s_call_b64":
            if i.text.rstrip().endswith("_dma"): vm += [("vmem",set())]*12
            continue
        if i.mn in ("s_endpgm","s_branch","s_setpc_b64"):
            vm=[]; lg=[]; continue
        if i.mn=="s_waitcnt":
            t=i.text
            m=re.search(r"vmcnt\((\d+)\)",t)
            if m:
                n=int(m.group(1)); vm = vm[len(vm)-n:] if n>0 and n<len(vm) else ([] if n==0 else vm)
            m=re.search(r"lgkmcnt\((\d+)\)",t)
            if m:
                n=int(m.group(1))
                if n==0: lg=[]
                elif any(k=="smem" for k,_ in lg): pass
                else: lg = lg[len(lg)-n:] if n<len(lg) else lg
            continue
        use=set(i.src)|set(i.dst)
        for k,d in vm+lg:
            if d & use:
                if (d & set(i.src)) or not (i.kind==k):
                    print(f"WAITCNT ERROR [{name}] line {idx}: '{i.text}' touches pending {k} result {sorted(d&use)[:4]}")
                    errs+=1
        if i.kind=="vmem":
            vm.append(("vmem",set(i.dst)))
            if len(vm)>63: print(f"WARN [{name}] vmcnt overflow at {i.text}")
        if i.kind=="ds": lg.append(("ds",set(i.dst)))
        if i.kind=="smem": lg.append(("smem",set(i.dst)))
    if errs: raise SystemExit(f"{errs} waitcnt errors in {name}")

def kernel_text(name, body, vgpr=256, sgpr=100, accum=None):
    if accum is None: accum=min(256,(vgpr+3)//4*4)
    return f""".globl {name}
.p2align 8
.type {name},@function
{name}:
{body}
.section .rodata,"a"
.p2align 6
.amdhsa_kernel {name}
  .amdhsa_next_free_vgpr {vgpr}
  .amdhsa_next_free_sgpr {sgpr}
  .amdhsa_accum_offset {accum}
  .amdhsa_group_segment_fixed_size 0
  .amdhsa_kernarg_size 112
  .amdhsa_user_sgpr_count 2
  .amdhsa_user_sgpr_kernarg_segment_ptr 1
  .amdhsa_system_sgpr_workgroup_id_x 1
  .amdhsa_float_denorm_mode_32 3
.end_amdhsa_kernel
.text
"""
def v(a,n=1): return f"v{a}" if n==1 else f"v[{a}:{a+n-1}]"
def s(a,n=1): return f"s{a}" if n==1 else f"s[{a}:{a+n-1}]"
```

```python
from asmlib import *
import struct
WS_EPOCH= 0x0000000
WS_STAT = 0x0001000
WS_CS   = 0x00C0000
WS_FLAG = 0x0030000
WS_H    = 0x0100000
WS_W2P  = 0x0900000
WS_XNT  = 0x0C00000
WS_KT   = 0x0F00000
WS_YT   = 0x1200000
WS_SIZE = 0x1500000
WS_STAMP= 0x4000000
H_BYTES = 2048*1728*2
X_BYTES = 2048*640*2
W_BYTES = 640*1728*2
LOG2E = 1.4426950408889634
OOB = 0x7fffff00
def fbits(x): return "0x%08x" % struct.unpack("<I", struct.pack("<f", x))[0]

def srd(a, d, b, size, off=0):
    if off:
        a(f"s_add_u32 s{d}, s{b}, {off}")
        a(f"s_addc_u32 s{d+1}, s{b+1}, 0")
    else:
        a(f"s_mov_b32 s{d}, s{b}")
        a(f"s_mov_b32 s{d+1}, s{b+1}")
    a(f"s_mov_b32 s{d+2}, {size}")
    a(f"s_mov_b32 s{d+3}, 0x20000")

def bf16r(a, dst, src):
    a(f"v_cvt_pk_bf16_f32 v{dst}, v{src}, v{src}")
    a(f"v_lshlrev_b32 v{dst}, 16, v{dst}")

def stampx(a,opt,k):
    if opt.get("stamp"): a(f"s_memrealtime s[{60+2*k}:{61+2*k}]")
def stamp0(a,opt):
    if opt.get("stamp"):
        a("s_memrealtime s[60:61]\ns_memtime s[76:77]")
        for k in list(range(62,72))+[78,79,80,81]: a(f"s_mov_b32 s{k}, 0")
def write_stamp(a,opt,kidx,ws=6):
    if not opt.get("stamp"): return
    a(f"""
    s_waitcnt vmcnt(0)
    s_memrealtime s[72:73]
    s_memtime s[74:75]
    s_waitcnt lgkmcnt(0)
    s_sub_u32 s74, s74, s76
    s_sub_u32 s75, s80, s78
    """)
    for k in range(16): a(f"v_mov_b32 v{40+k}, s{60+k}")
    a(f"""
    s_add_u32 s89, s2, {kidx*1024}
    s_lshl_b32 s89, s89, 6
    s_add_u32 s89, s89, {WS_STAMP}
    v_mov_b32 v59, s89
    s_mov_b64 s[82:83], exec
    s_mov_b64 exec, 1
    global_store_dwordx4 v59, v[40:43], s[{ws}:{ws+1}]
    global_store_dwordx4 v59, v[44:47], s[{ws}:{ws+1}] offset:16
    global_store_dwordx4 v59, v[48:51], s[{ws}:{ws+1}] offset:32
    global_store_dwordx4 v59, v[52:55], s[{ws}:{ws+1}] offset:48
    s_waitcnt vmcnt(0)
    s_mov_b64 exec, s[82:83]
    """)

XF=WS_FLAG; PFL=WS_FLAG+0x2000; KFL=WS_FLAG+0x10000; HFL=WS_FLAG+0x20000; YFL=WS_FLAG+0x40000
SPIN_MAX = 100000
def poll(a, lab, loads, regs, cnt="s47", sleep=1):
    a(f"s_mov_b32 {cnt}, {SPIN_MAX}")
    a(f"s_branch L_{lab}_go")
    a.label(f"L_{lab}_again")
    if sleep: a(f"s_sleep {sleep}")
    a.label(f"L_{lab}_go")
    for l in loads: a(l)
    a(f"s_sub_u32 {cnt}, {cnt}, 1\ns_waitcnt vmcnt(0)")
    for r in regs: a(f"v_xor_b32 v{r}, s3, v{r}")
    rs=list(regs)
    while len(rs)>1:
        if len(rs)>=3:
            a(f"v_or3_b32 v{rs[0]}, v{rs[0]}, v{rs[1]}, v{rs[2]}"); rs=[rs[0]]+rs[3:]
        else:
            a(f"v_or_b32 v{rs[0]}, v{rs[0]}, v{rs[1]}"); rs=[rs[0]]
    a(f"""v_cmp_ne_u32 vcc, 0, v{rs[0]}
    s_cmp_eq_u32 {cnt}, 0
    s_cbranch_scc1 L_{lab}_done
    s_cbranch_vccnz L_{lab}_again""")
    a.label(f"L_{lab}_done")
def flag(a, soff, vt=2):
    a(f"""v_mov_b32 v{vt}, s3
    v_mov_b32 v{vt+1}, 0
    s_mov_b64 exec, 1
    buffer_store_dword v{vt}, v{vt+1}, s[20:23], {soff} offen sc1
    s_mov_b64 exec, -1""")

def lstamp(a,opt,k,vr=255):
    if opt.get("lstamp"):
        a(f"s_memrealtime s[86:87]\ns_waitcnt lgkmcnt(0)\nv_writelane_b32 v{vr}, s86, {k}")
def lstamp_write(a,opt,vr=255):
    if opt.get("lstamp"):
        a(f"""s_lshl_b32 s86, s2, 3
        s_add_u32 s86, s86, s26
        s_lshl_b32 s86, s86, 8
        s_add_u32 s86, s86, {WS_STAMP+0x400000}
        v_lshl_add_u32 v254, v1, 2, s86
        global_store_dword v254, v{vr}, s[6:7]""")
```

```python
import sys
sys.path.insert(0,"gen")
from common import *
v1=open("v1.s").read()
def k_chain(name,n,stride):
    a=Asm()
    a(f"s_load_dwordx2 s[4:5], s[0:1], 56\ns_cmp_ge_u32 s2, 1\ns_cbranch_scc1 L_{name}_end\ns_waitcnt lgkmcnt(0)")
    srd(a,8,4,X_BYTES)
    a("v_mov_b32 v1, 0\ns_mov_b32 s12, %d"%n)
    a.label(f"L_{name}_l")
    a(f"buffer_load_dword v2, v1, s[8:11], 0 offen\ns_waitcnt vmcnt(0)\nv_and_b32 v2, 0, v2\nv_add_u32 v1, {stride}, v1\nv_add_u32 v1, v1, v2\ns_sub_u32 s12, s12, 1\ns_cmp_lg_u32 s12, 0\ns_cbranch_scc1 L_{name}_l")
    a.label(f"L_{name}_end"); a("s_endpgm")
    return kernel_text(name,a.finalize(name=name),vgpr=8)
def k_stream(name,nwg,kb,arg,size,flags=""):
    a=Asm()
    a(f"s_load_dwordx2 s[4:5], s[0:1], {arg}\ns_cmp_ge_u32 s2, {nwg}\ns_cbranch_scc1 L_{name}_end\ns_waitcnt lgkmcnt(0)")
    srd(a,8,4,size, off=(0x8000000 if arg==104 else 0))
    a(f"v_lshlrev_b32 v5, 7, v0\ns_mul_i32 s20, s2, {kb*1024}\nv_add_u32 v5, s20, v5")
    for i in range(kb//64):
        a(f"s_mov_b32 s30, {i*65536}\nbuffer_load_dword v{8+i}, v5, s[8:11], s30 offen {flags}")
    a("s_waitcnt vmcnt(0)")
    a.label(f"L_{name}_end"); a("s_endpgm")
    return kernel_text(name,a.finalize(name=name),vgpr=32)
def mkfile(fn, launch, text):
    i=v1.index("; @launch kernel=p1_kernel")
    s=v1[:i]+launch+v1[i:]+text
    open(fn,"w").write(s)
mkfile("q_triv.s","; @launch kernel=s_kernel grid=(5,1,1) block=(512,1,1) lds=0\n",k_stream("s_kernel",0,64,56,X_BYTES))
mkfile("q_chain.s","; @launch kernel=c_kernel grid=(1,1,1) block=(64,1,1) lds=0\n",k_chain("c_kernel",64,40960))
mkfile("q_s5.s","; @launch kernel=s_kernel grid=(5,1,1) block=(512,1,1) lds=0\n",k_stream("s_kernel",5,512,56,X_BYTES))
mkfile("q_s5nt.s","; @launch kernel=s_kernel grid=(5,1,1) block=(512,1,1) lds=0\n",k_stream("s_kernel",5,512,56,X_BYTES,"nt"))
mkfile("q_bw.s","; @launch kernel=s_kernel grid=(256,1,1) block=(512,1,1) lds=0\n",k_stream("s_kernel",256,128,104,0x4000000))
mkfile("q_bwnt.s","; @launch kernel=s_kernel grid=(256,1,1) block=(512,1,1) lds=0\n",k_stream("s_kernel",256,128,104,0x4000000,"nt"))
```
